```python
import torch

def _softmax(x, axis=-1):
    return torch.softmax(x, dim=axis)
def _gelu(x):
    return torch.nn.functional.gelu(x, approximate="tanh")
def _silu(x):
    return torch.nn.functional.silu(x)
def _sigmoid(x):
    return torch.sigmoid(x)
def _layernorm(x, axis=-1, eps=1e-5):
    m = x.mean(dim=axis, keepdim=True)
    v = x.var(dim=axis, keepdim=True, unbiased=False)
    return (x - m) / torch.sqrt(v + eps)
def _scatter_add(tgt, idx, src, axis=0):
    return tgt.clone().index_add_(axis, idx, src)
def _segment_sum(src, seg, n):
    out = torch.zeros((n,) + src.shape[1:], dtype=src.dtype)
    return out.index_add_(0, seg, src)
def _pad(x, pw):
    flat = tuple(v for pair in reversed(pw) for v in pair)
    return torch.nn.functional.pad(x, flat)

kernel_name = 'gated_mix__linear_kernel_hedgehog__mixer_channel_mlp__prompt'

def setup_inputs():

    _w = (lambda a: (lambda t: t.to(torch.bfloat16) if t.is_floating_point() else t)(torch.as_tensor(a)))
    def _A_setup():
        B, S, D, H = 1, 2048, 512, 32
        Dh = D // H
        return {
            "x": _w((lambda *s: torch.randn(*s, dtype=torch.bfloat16) * 0.05)(B, S, D)),
            "wqkv": _w((lambda *s: torch.randn(*s, dtype=torch.bfloat16) * 0.8)(D, 3 * D)),
            "w_phi": _w((lambda *s: torch.randn(*s, dtype=torch.bfloat16) * 0.8)(H, Dh, Dh) * (Dh ** -0.5)),
            "wo": _w((lambda *s: torch.randn(*s, dtype=torch.bfloat16) * 0.1)(D, D)),
        }
    _A_in = _A_setup()

    def _B_setup():
        B, S, D, F = 1, 2048, 512, 1376
        return {
            "x": _w((lambda *s: torch.randn(*s, dtype=torch.bfloat16) * 0.05)(B, S, D)),
            "w1": _w((lambda *s: torch.randn(*s, dtype=torch.bfloat16) * 0.8)(D, F) * (D ** -0.5)),
            "b1": _w((lambda *s: torch.randn(*s, dtype=torch.bfloat16) * 0.4)(F)),
            "w2": _w((lambda *s: torch.randn(*s, dtype=torch.bfloat16) * 0.05)(F, D) * (F ** -0.5)),
            "b2": _w((lambda *s: torch.randn(*s, dtype=torch.bfloat16) * 0.05)(D)),
        }
    _B_in = _B_setup()

    return {
        "A_x": _A_in["x"],
        "A_wqkv": _A_in["wqkv"],
        "A_w_phi": _A_in["w_phi"],
        "A_wo": _A_in["wo"],
        "B_x": _B_in["x"],
        "B_w1": _B_in["w1"],
        "B_b1": _B_in["b1"],
        "B_w2": _B_in["w2"],
        "B_b2": _B_in["b2"],
        "gate_w": _w((lambda *s: torch.randn(*s, dtype=torch.bfloat16) * 0.05)(512) * 16.0),
    }

def reference(A_x, A_wqkv, A_w_phi, A_wo, B_x, B_w1, B_b1, B_w2, B_b2, gate_w):
    def _A_ref(x, wqkv, w_phi, wo):
        B, S, D = x.shape
        H = 32; Dh = D // H
        qkv = (lambda x, *d: x.permute(*d))((x @ wqkv).reshape(B, S, 3, H, Dh), 2, 0, 3, 1, 4)
        q, k, v = qkv[0], qkv[1], qkv[2]
        pq = torch.einsum("bhsd,hdf->bhsf", q, w_phi)
        pk = torch.einsum("bhsd,hdf->bhsf", k, w_phi)
        phi_q = torch.concatenate([_softmax(pq, axis=-1), _softmax(-pq, axis=-1)], axis=-1)
        phi_k = torch.concatenate([_softmax(pk, axis=-1), _softmax(-pk, axis=-1)], axis=-1)
        kv = torch.einsum("bhsf,bhsd->bhfd", phi_k, v)
        z  = torch.einsum("bhsf->bhf", phi_k)
        num = torch.einsum("bhqf,bhfd->bhqd", phi_q, kv)
        den = torch.einsum("bhqf,bhf->bhq", phi_q, z)[..., None] + 1e-6
        o = num / den
        return (lambda x, *d: x.permute(*d))(o, 0, 2, 1, 3).reshape(B, S, D) @ wo

    def _B_ref(x, w1, b1, w2, b2):
        y = _layernorm(x, axis=-1)
        h = _gelu(torch.einsum("bsd,df->bsf", y, w1) + b1)
        return torch.einsum("bsf,fd->bsd", h, w2) + b2

    x = A_x
    g = _sigmoid((x * gate_w).sum(-1, keepdims=True))
    a = _A_ref(x, A_wqkv, A_w_phi, A_wo)
    b = _B_ref(x, B_w1, B_b1, B_w2, B_b2)
    return g * a + (1 - g) * b
```

```python
import re

TRANS = ("v_exp_f32", "v_log_f32", "v_rcp_f32", "v_rsq_f32", "v_sqrt_f32", "v_sin_f32", "v_cos_f32")
_REG = re.compile(r"^(-|abs\()?(v|s|a)(?:\[(\d+):(\d+)\]|(\d+))\)?$")


def regs_of(tok):
    tok = tok.strip()
    if tok in ("vcc", "vcc_lo", "vcc_hi"):
        return [("s", "vcc")]
    if tok == "exec":
        return [("s", "exec")]
    if tok == "m0":
        return [("s", "m0")]
    m = _REG.match(tok)
    if not m:
        return []
    k = m.group(2)
    if m.group(3) is not None:
        return [(k, i) for i in range(int(m.group(3)), int(m.group(4)) + 1)]
    return [(k, int(m.group(5)))]


def split_ops(s):
    out, depth, cur = [], 0, ""
    for ch in s:
        if ch in "[(":
            depth += 1
        if ch in "])":
            depth -= 1
        if ch == "," and depth == 0:
            out.append(cur.strip())
            cur = ""
        else:
            cur += ch
    if cur.strip():
        out.append(cur.strip())
    return out


class Ins:
    __slots__ = ("text", "mn", "kind", "w", "r", "passes", "srcc", "ab", "dpp", "lds", "nstates", "wide_store_data")


def parse(text):
    t = text.split(";")[0].strip()
    I = Ins()
    I.text = text
    parts = t.split(None, 1)
    mn = parts[0]
    I.mn = mn
    rest = parts[1] if len(parts) > 1 else ""
    ops = split_ops(rest)
    mods = ""
    if ops:
        l = ops[-1].split()
        ops[-1] = l[0]
        mods = " ".join(l[1:])
    mo = re.search(r"offset:(\d+)", t)
    if mo:
        lim = 65535 if mn.startswith("ds_") else 4095
        assert int(mo.group(1)) <= lim, "offset too large: " + text
    I.w, I.r = [], []
    I.passes = 0
    I.srcc, I.ab = [], []
    I.dpp = ("row_" in mods) or ("quad_perm" in mods) or ("wave_" in mods)
    I.lds = False
    I.nstates = 1
    I.wide_store_data = []
    R = lambda i: regs_of(ops[i]) if i < len(ops) else []
    allr = lambda a: [x for i in range(a, len(ops)) for x in regs_of(ops[i])]
    if mn == "s_nop":
        I.kind = "nop"
        I.nstates = int(ops[0], 0) + 1
    elif mn.startswith("v_mfma"):
        I.kind = "mfma"
        I.passes = 8 if "32x32" in mn else 4
        I.w = R(0)
        I.ab = R(1) + R(2)
        I.srcc = R(3)
        I.r = I.ab + I.srcc
    elif mn.startswith("v_"):
        I.kind = "trans" if mn.replace("_e32", "").replace("_e64", "") in TRANS else "valu"
        if mn.startswith("v_cmp"):
            I.w = R(0)
            I.r = allr(1)
            if mn.startswith("v_cmpx"):
                I.w = I.w + [("s", "exec")]
        elif mn.startswith("v_permlane") and "swap" in mn:
            I.w = R(0) + R(1)
            I.r = R(0) + R(1)
        elif mn.startswith(("v_add_co", "v_sub_co", "v_addc_co", "v_subb_co", "v_subrev_co")):
            I.w = R(0) + R(1)
            I.r = allr(2)
        else:
            I.w = R(0)
            I.r = allr(1)
            if mn.startswith(("v_fmac", "v_dot2c", "v_pk_fmac", "v_mac", "v_writelane")):
                I.r = I.r + R(0)
            if mn.startswith("v_cndmask") and len(ops) == 3:
                I.r = I.r + [("s", "vcc")]
    elif mn.startswith("ds_"):
        I.kind = "ds"
        if mn.startswith(("ds_read", "ds_bpermute", "ds_permute", "ds_swizzle")):
            I.w = R(0)
            I.r = allr(1)
        else:
            I.r = allr(0)
    elif mn.startswith(("buffer_", "global_")):
        I.kind = "vmem"
        islds = " lds" in (" " + mods)
        I.lds = islds
        if "_load" in mn and not islds:
            I.w = R(0)
            I.r = allr(1)
        elif "_store" in mn:
            I.r = allr(0)
            data = R(0) if mn.startswith("buffer_") else R(1)
            if "x3" in mn or "x4" in mn:
                I.wide_store_data = data
        else:
            I.r = allr(0)
            if "atomic" in mn and "sc0" in mods:
                I.w = R(0) if mn.startswith("buffer_") else R(0)
        if islds:
            I.r = I.r + [("s", "m0")]
    elif mn.startswith("s_"):
        I.kind = "salu"
        if mn.startswith(("s_cmp", "s_cbranch", "s_branch", "s_waitcnt", "s_barrier", "s_endpgm", "s_sleep", "s_setprio", "s_bitcmp")):
            I.r = allr(0)
        else:
            I.w = R(0)
            I.r = allr(1)
            if "saveexec" in mn:
                I.w = I.w + [("s", "exec")]
    else:
        raise ValueError("unknown instr " + text)
    return I


def need(P, C):
    n = 0
    pw = set(P.w)
    if not pw and not P.srcc and not P.wide_store_data:
        return 0
    cr, cw = set(C.r), set(C.w)
    isvalu = lambda X: X.kind in ("valu", "trans")
    if isvalu(P):
        pv = {x for x in pw if x[0] in "va"}
        ps = {x for x in pw if x[0] == "s"}
        if pv & cr:
            if C.kind == "mfma":
                n = max(n, 2)
            if C.mn.startswith("v_permlane") or C.dpp:
                n = max(n, 2)
            if C.mn.startswith(("v_readfirstlane", "v_readlane")):
                n = max(n, 1)
            if P.kind == "trans" and C.kind != "trans":
                n = max(n, 1)
        if P.kind == "trans" and (pv & cw) and C.kind != "trans":
            n = max(n, 1)
        if ps & cr:
            if isvalu(C):
                n = max(n, 4 if C.mn.startswith(("v_readlane", "v_writelane")) else 2)
            if C.kind == "vmem":
                n = max(n, 5)
            if C.kind == "mfma" and ("s", "exec") in ps:
                n = max(n, 4)
            if C.kind == "salu":
                n = max(n, 1)
        if ("s", "exec") in ps:
            n = max(n, 5)
    if P.kind == "mfma":
        big = 12 if P.passes == 8 else 8
        ovl = 10 if P.passes == 8 else 6
        if C.kind == "mfma":
            if pw & set(C.ab):
                n = max(n, big)
            if pw & set(C.srcc):
                if not (C.srcc == P.w and C.passes == P.passes):
                    n = max(n, ovl)
            if (pw & cw) and not (pw & set(C.srcc)):
                n = max(n, big)
        else:
            if pw & (cr | cw):
                n = max(n, big)
            if isvalu(C) and (set(P.srcc) & cw):
                n = max(n, 7 if P.passes == 8 else 3)
    if P.wide_store_data and (set(P.wide_store_data) & cw):
        n = max(n, 2)
    if P.kind == "salu" and ("s", "m0") in pw and C.lds:
        n = max(n, 1)
    return n


class Asm:
    def __init__(self):
        self.items = []

    def __call__(self, text):
        for l in text.strip().split("\n"):
            l = l.strip()
            if l:
                self.items.append(l)

    def raw(self, text):
        self.items.append("!" + text)

    def label(self, name):
        self.items.append(name + ":")

    def comment(self, c):
        self.items.append("; " + c)

    def fence(self):
        self("s_nop 7")
        self("s_nop 7")

    def finish(self):
        out = []
        hist = []
        for it in self.items:
            if it.startswith("!"):
                out.append(it[1:])
                continue
            if it.startswith(";"):
                out.append("    " + it)
                continue
            if it.endswith(":"):
                out.append(it)
                continue
            C = parse(it)
            req = 0
            dist = 0
            for P in reversed(hist):
                k = need(P, C)
                if k > dist:
                    req = max(req, k - dist)
                dist += P.nstates
                if dist >= 13:
                    break
            while req > 0:
                k = min(req, 8)
                out.append("    s_nop %d" % (k - 1))
                hist.append(parse("s_nop %d" % (k - 1)))
                req -= k
            out.append("    " + it)
            hist.append(C)
            if len(hist) > 40:
                hist = hist[-20:]
        return "\n".join(out) + "\n"


def vr(a, n=1):
    return "v%d" % a if n == 1 else "v[%d:%d]" % (a, a + n - 1)


def sr(a, n=1):
    return "s%d" % a if n == 1 else "s[%d:%d]" % (a, a + n - 1)
```

```python
import sys
from asmlib import Asm, vr, sr

NAME = "gated_mix__linear_kernel_hedgehog__mixer_channel_mlp__prompt"

H_OFF, H_SIZE = 0, 64 * 86 * 1024
PHIQ_OFF, PHIQ_SIZE = 0x600000, 0x400000
KVP_OFF, KVP_SIZE = 0xA00000, 0x200000
KVF_OFF, KVF_SIZE = 0xC00000, 0x10000
G_OFF, G_SIZE = 0xC10000, 0x2000

L2E = 0x3FB8AA3B
ONES = 0x3F803F80


def fbits(x):
    import struct
    return struct.unpack("<I", struct.pack("<f", x))[0]


def srd(A, d, lo, hi, size, off=0):
    if off:
        A(f"s_add_u32 s{d}, s{lo}, {off}")
        A(f"s_addc_u32 s{d+1}, s{hi}, 0")
    else:
        A(f"s_mov_b32 s{d}, s{lo}")
        A(f"s_mov_b32 s{d+1}, s{hi}")
    A(f"s_mov_b32 s{d+2}, {size}")
    A(f"s_mov_b32 s{d+3}, 0x00020000")


def load_kernargs(A):
    A("s_load_dwordx16 s[32:47], s[0:1], 0")
    A("s_load_dwordx8 s[48:55], s[0:1], 64")
    A("s_load_dwordx2 s[56:57], s[0:1], 96")


P_AX, P_WQKV, P_WPHI, P_WO, P_BX, P_W1, P_B1, P_W2 = 32, 34, 36, 38, 40, 42, 44, 46
P_B2, P_GW, P_OUT, P_DBG, P_WS = 48, 50, 52, 54, 56

K1_WB = [0, 24576, 49152]
K1_XB = [73728, 90112, 106496]
K1_GATE = 122880
K1_LDS = 124928


def k1_path(A, typ):
    qkv = typ == "qkv"
    stride = 3072 if qkv else 2752
    sec = 1024 if qkv else 128
    L = "k1q" if qkv else "k1m"
    if qkv:
        srd(A, 8, P_AX, P_AX + 1, 2048 * 1024)
        srd(A, 12, P_WQKV, P_WQKV + 1, 512 * 3072)
        srd(A, 16, P_WPHI, P_WPHI + 1, 32 * 512)
        srd(A, 20, P_GW, P_GW + 1, 1024)
        srd(A, 24, P_WS, P_WS + 1, PHIQ_SIZE, PHIQ_OFF)
        srd(A, 28, P_WS, P_WS + 1, KVP_SIZE, KVP_OFF)
    else:
        srd(A, 8, P_AX, P_AX + 1, 2048 * 1024)
        srd(A, 12, P_W1, P_W1 + 1, 512 * 2752)
        srd(A, 16, P_B1, P_B1 + 1, 2752)
        srd(A, 24, P_WS, P_WS + 1, H_SIZE, H_OFF)
    A("v_and_b32 v7, 31, v1")
    A("v_lshrrev_b32 v15, 5, v1")
    if qkv:
        A("s_lshl_b32 s3, s5, 2")
        A("s_lshl_b32 s59, s58, 1")
        A("s_add_u32 s3, s3, s59")
        A("v_lshrrev_b32 v132, 4, v7")
        A("v_add_u32 v132, s3, v132")
        A("v_lshlrev_b32 v132, 9, v132")
        A("v_and_b32 v133, 15, v7")
        A("v_lshl_add_u32 v132, v133, 1, v132")
        A("v_lshl_add_u32 v132, v15, 7, v132")
        for j in range(8):
            d = (j & 3) + 8 * (j >> 2)
            A(f"buffer_load_ushort v{140 + j}, v132, s[16:19], 0 offen offset:{d * 32}")
        A("s_cmp_lg_u32 s6, 0")
        A(f"s_cbranch_scc1 {L}_nogate")
        A("v_lshlrev_b32 v133, 4, v1")
        A(f"s_mov_b32 m0, {K1_GATE}")
        A("buffer_load_dwordx4 v133, s[20:23], 0 offen lds")
        A.label(f"{L}_nogate")
        A("s_nop 1")
    else:
        A("s_mul_i32 s3, s5, 6")
        A("s_add_u32 s3, s3, s58")
        A("s_lshl_b32 s3, s3, 6")
        A("v_lshlrev_b32 v132, 3, v15")
        A("v_add_u32 v132, s3, v132")
        for i in range(3):
            for q in range(4):
                r = 184 + (i * 4 + q) * 2
                A(f"buffer_load_dwordx2 v[{r}:{r+1}], v132, s[16:19], 0 offen offset:{i * 128 + q * 16}")
    A("v_lshrrev_b32 v132, 3, v1")
    A("s_lshl_b32 s3, s4, 7")
    A("s_lshl_b32 s59, s6, 4")
    A("s_add_u32 s3, s3, s59")
    A("v_add_u32 v132, s3, v132")
    A("v_lshlrev_b32 v132, 10, v132")
    A("v_and_b32 v133, 7, v1")
    A("v_lshrrev_b32 v134, 4, v1")
    A("v_xor_b32 v135, v133, v134")
    A("v_lshl_add_u32 v2, v135, 4, v132")
    A("v_xor_b32 v135, 4, v135")
    A("v_lshl_add_u32 v3, v135, 4, v132")
    A("v_add_u32 v3, 8192, v3")
    A("v_bfe_u32 v132, v1, 2, 2")
    A("s_lshl_b32 s3, s6, 3")
    A("v_add_u32 v132, s3, v132")
    A(f"s_mov_b32 s59, {stride}")
    A("v_mul_lo_u32 v132, v132, s59")
    A("v_and_b32 v133, 3, v1")
    A("v_lshl_add_u32 v132, v133, 4, v132")
    A(f"s_mul_i32 s3, s5, {128 if qkv else 384}")
    A("v_add_u32 v132, s3, v132")
    A("v_lshrrev_b32 v134, 4, v1")

    def colbytes(dst, ttreg):
        A(f"v_lshrrev_b32 v136, 1, v{ttreg}")
        A(f"v_mul_u32_u24 v136, {sec}, v136")
        A(f"v_and_b32 v137, 1, v{ttreg}")
        A(f"v_lshl_add_u32 v136, v137, 6, v136")
        A(f"v_add_u32 v{dst}, v132, v136")
    colbytes(4, 134)
    A("v_add_u32 v135, 4, v134")
    A("v_subrev_u32 v138, 2, v134")
    A("v_cmp_gt_u32 vcc, 32, v1")
    A("v_cndmask_b32 v135, v138, v135, vcc")
    colbytes(5, 135)
    A(f"v_mov_b32 v138, {4 * stride}")
    A("v_cndmask_b32 v138, v138, 0, vcc")
    A("v_add_u32 v5, v5, v138")
    A("v_add_u32 v135, 2, v134")
    colbytes(6, 135)
    A(f"v_add_u32 v6, {4 * stride}, v6")
    A("s_lshl_b32 s60, s6, 11")
    A(f"s_add_u32 s60, s60, {K1_XB[0]}")
    A("s_mul_i32 s61, s6, 3072")

    def dma(c):
        b = c % 3
        A(f"s_mov_b32 s62, {c * 128}")
        A(f"s_mov_b32 s63, {c * 64 * stride}")
        for i in range(2):
            A(f"s_add_u32 m0, s60, {b * 16384 + i * 1024}")
            A(f"buffer_load_dwordx4 v{2 + i}, s[8:11], s62 offen lds")
        for i in range(3):
            A(f"s_add_u32 m0, s61, {b * 24576 + i * 1024}")
            A(f"buffer_load_dwordx4 v{4 + i}, s[12:15], s63 offen lds")
    dma(0)
    dma(1)
    A("s_lshl_b32 s3, s7, 5")
    A("v_add_u32 v132, s3, v7")
    A("v_lshlrev_b32 v132, 7, v132")
    A(f"v_add_u32 v132, {K1_XB[0]}, v132")
    A("v_bfe_u32 v133, v7, 1, 3")
    A("v_xor_b32 v133, v133, v15")
    for s in range(4):
        A(f"v_xor_b32 v134, {2 * s}, v133")
        A(f"v_lshl_add_u32 v{8 + s}, v134, 4, v132")
    A("v_mul_u32_u24 v12, 3072, v15")
    A("v_bfe_u32 v132, v1, 2, 2")
    A("v_lshl_add_u32 v12, v132, 6, v12")
    A("v_bfe_u32 v132, v1, 4, 1")
    A("v_lshl_add_u32 v12, v132, 5, v12")
    A("v_and_b32 v132, 3, v1")
    A("v_lshl_add_u32 v12, v132, 3, v12")
    A("s_lshl_b32 s3, s58, 8")
    A("v_add_u32 v12, s3, v12")
    A("v_add_u32 v13, 49152, v12")
    if qkv:
        A("v_lshlrev_b32 v14, 4, v15")
        A(f"v_add_u32 v14, {K1_GATE}, v14")
        A("v_mov_b32 v104, 0")
        A("v_lshlrev_b32 v132, 2, v15")
        A("v_sub_u32 v132, v7, v132")
        for sg in range(2):
            for p in range(4):
                f0 = ((2 * p) & 3) + 8 * ((2 * p) >> 2) + 16 * sg
                dst = 124 + sg * 4 + p
                A(f"v_cmp_eq_u32 vcc, {f0}, v132")
                A(f"v_mov_b32 v133, 0x3f80")
                A(f"v_cndmask_b32 v{dst}, 0, v133, vcc")
                A(f"v_cmp_eq_u32 vcc, {f0 + 1}, v132")
                A(f"v_mov_b32 v133, 0x3f800000")
                A(f"v_cndmask_b32 v133, 0, v133, vcc")
                A(f"v_or_b32 v{dst}, v{dst}, v133")
    else:
        for r in range(104, 109):
            A(f"v_mov_b32 v{r}, 0")
    A(f"s_mov_b32 s64, {ONES}")
    XF = [64, 80]
    WF = [68, 84]
    GF = [96, 100]
    nrd = 8 if qkv else 7

    def reads(st, c, s):
        b = c % 3
        A(f"ds_read_b128 v[{XF[st]}:{XF[st]+3}], v{8 + s} offset:{b * 16384}")
        base, imm0 = (12, b * 24576) if b < 2 else (13, 0)
        for i in range(3):
            for jj in range(2):
                r = WF[st] + i * 4 + jj * 2
                A(f"ds_read_b64_tr_b16 v[{r}:{r+1}], v{base} offset:{imm0 + s * 6144 + jj * 1536 + i * 512}")
        if qkv:
            A(f"ds_read_b128 v[{GF[st]}:{GF[st]+3}], v14 offset:{(c * 4 + s) * 32}")

    for c in range(8):
        A.comment(f"chunk {c}")
        A(f"s_waitcnt vmcnt({5 if c < 7 else 0})")
        A("s_barrier")
        reads(0, c, 0)
        if c + 2 < 8:
            dma(c + 2)
        for s in range(4):
            st = s & 1
            if s < 3:
                reads(st ^ 1, c, s + 1)
                A(f"s_waitcnt lgkmcnt({nrd})")
            else:
                A("s_waitcnt lgkmcnt(0)")
            x = f"v[{XF[st]}:{XF[st]+3}]"
            first = (c == 0 and s == 0)
            for i in range(3):
                acc = f"v[{16 + 16 * i}:{31 + 16 * i}]"
                w = f"v[{WF[st] + 4 * i}:{WF[st] + 4 * i + 3}]"
                cin = "0" if first else acc
                if qkv and i == 2:
                    A(f"v_mfma_f32_32x32x16_bf16 {acc}, {x}, {w}, {cin}")
                else:
                    A(f"v_mfma_f32_32x32x16_bf16 {acc}, {w}, {x}, {cin}")
                if qkv:
                    if i == 0:
                        for k in range(4):
                            A(f"v_dot2c_f32_bf16 v104, v{XF[st]+k}, v{GF[st]+k}")
                else:
                    if i == 0:
                        for k in range(4):
                            A(f"v_dot2c_f32_bf16 v104, s64, v{XF[st]+k}")
                            A(f"v_dot2c_f32_bf16 v105, v{XF[st]+k}, v{XF[st]+k}")
                    for k in range(4):
                        A(f"v_dot2c_f32_bf16 v{106+i}, s64, v{WF[st]+4*i+k}")
    A.fence()
    if qkv:
        k1_epi_qkv(A, L)
    else:
        k1_epi_mlp(A, L)


def softmax_head(A, p, outp, outm, t):
    M, N, C, D = t, t + 1, t + 2, t + 3
    ep, em = t + 4, t + 12
    A(f"v_max3_f32 v{M}, v{p}, v{p+1}, v{p+2}")
    A(f"v_max3_f32 v{N}, -v{p}, -v{p+1}, -v{p+2}")
    A(f"v_max3_f32 v{M}, v{M}, v{p+3}, v{p+4}")
    A(f"v_max3_f32 v{N}, v{N}, -v{p+3}, -v{p+4}")
    A(f"v_max3_f32 v{M}, v{M}, v{p+5}, v{p+6}")
    A(f"v_max3_f32 v{N}, v{N}, -v{p+5}, -v{p+6}")
    A(f"v_max_f32 v{M}, v{M}, v{p+7}")
    A(f"v_max_f32_e64 v{N}, v{N}, -v{p+7}")
    A(f"v_permlane32_swap_b32 v{M}, v{N}")
    A(f"v_max_f32 v{C}, v{M}, v{N}")
    A(f"v_mul_f32 v{C}, s65, v{C}")
    A(f"v_mov_b32 v{D}, v{C}")
    A(f"v_permlane32_swap_b32 v{C}, v{D}")
    for i in range(8):
        A(f"v_fma_f32 v{ep+i}, v{p+i}, s65, -v{C}")
        A(f"v_fma_f32 v{em+i}, -v{p+i}, s65, -v{D}")
    for i in range(8):
        A(f"v_exp_f32 v{ep+i}, v{ep+i}")
        A(f"v_exp_f32 v{em+i}, v{em+i}")
    A(f"v_add_f32 v{M}, v{ep}, v{ep+1}")
    A(f"v_add_f32 v{N}, v{em}, v{em+1}")
    for i in range(2, 8):
        A(f"v_add_f32 v{M}, v{M}, v{ep+i}")
        A(f"v_add_f32 v{N}, v{N}, v{em+i}")
    A(f"v_permlane32_swap_b32 v{M}, v{N}")
    A(f"v_add_f32 v{C}, v{M}, v{N}")
    A(f"v_rcp_f32 v{C}, v{C}")
    A(f"v_mov_b32 v{D}, v{C}")
    A(f"v_permlane32_swap_b32 v{C}, v{D}")
    for i in range(8):
        A(f"v_mul_f32 v{ep+i}, v{ep+i}, v{C}")
        A(f"v_mul_f32 v{em+i}, v{em+i}, v{D}")
    for i in range(4):
        A(f"v_cvt_pk_bf16_f32 v{outp+i}, v{ep+2*i}, v{ep+2*i+1}")
        A(f"v_cvt_pk_bf16_f32 v{outm+i}, v{em+2*i}, v{em+2*i+1}")


def feature_map(A, acc, out):
    for i in range(8):
        A(f"v_cvt_pk_bf16_f32 v{132+i}, v{acc+2*i}, v{acc+2*i+1}")
    A("v_mfma_f32_32x32x16_bf16 v[140:155], v[116:119], v[132:135], 0")
    A("v_mfma_f32_32x32x16_bf16 v[140:155], v[120:123], v[136:139], v[140:155]")
    softmax_head(A, 140, out, out + 4, 176)
    softmax_head(A, 148, out + 8, out + 12, 196)


def k1_epi_qkv(A, L):
    A(f"s_mov_b32 s65, {L2E}")
    for i in range(4):
        A(f"v_lshl_or_b32 v{112+i}, v{141+2*i}, 16, v{140+2*i}")
    A("v_cmp_gt_u32 vcc, 16, v7")
    for i in range(4):
        A(f"v_cndmask_b32 v{116+i}, 0, v{112+i}, vcc")
        A(f"v_cndmask_b32 v{120+i}, v{112+i}, 0, vcc")
    A("v_mov_b32 v132, v104")
    A("v_permlane32_swap_b32 v104, v132")
    A("v_add_f32 v104, v104, v132")
    A("v_mul_f32 v104, s65, v104")
    A("v_exp_f32 v104, -v104")
    A("v_add_f32 v104, 1.0, v104")
    A("v_rcp_f32 v104, v104")
    A("s_or_b32 s3, s5, s58")
    A("s_cmp_lg_u32 s3, 0")
    A(f"s_cbranch_scc1 {L}_nog")
    srd(A, 20, P_WS, P_WS + 1, G_SIZE, G_OFF)
    A("s_lshl_b32 s3, s4, 7")
    A("s_lshl_b32 s59, s7, 5")
    A("s_add_u32 s3, s3, s59")
    A("v_add_u32 v132, s3, v7")
    A("v_lshlrev_b32 v132, 2, v132")
    A("buffer_store_dword v104, v132, s[20:23], 0 offen")
    A.label(f"{L}_nog")
    A.fence()
    feature_map(A, 16, 160)
    A("s_lshl_b32 s3, s4, 2")
    A("s_add_u32 s3, s3, s7")
    A("s_lshl_b32 s3, s3, 5")
    A("s_lshl_b32 s59, s5, 2")
    A("s_add_u32 s3, s3, s59")
    A("s_lshl_b32 s59, s58, 1")
    A("s_add_u32 s3, s3, s59")
    A("s_lshl_b32 s3, s3, 11")
    A("v_lshlrev_b32 v216, 4, v1")
    for i in range(4):
        A(f"buffer_store_dwordx4 v[{160+4*i}:{163+4*i}], v216, s[24:27], s3 offen offset:{i*1024}")
    feature_map(A, 32, 220)
    A("v_mfma_f32_32x32x16_bf16 v[16:31], v[220:223], v[124:127], 0")
    A("v_mfma_f32_32x32x16_bf16 v[32:47], v[228:231], v[124:127], 0")
    A("v_mfma_f32_32x32x16_bf16 v[16:31], v[224:227], v[128:131], v[16:31]")
    A("v_mfma_f32_32x32x16_bf16 v[32:47], v[232:235], v[128:131], v[32:47]")
    for i in range(8):
        A(f"v_cvt_pk_bf16_f32 v{132+i}, v{48+2*i}, v{49+2*i}")
    A("v_cmp_gt_u32 vcc, 16, v7")
    A("v_mov_b32 v156, s64")
    for i in range(8):
        A(f"v_cndmask_b32 v{140+i}, v156, v{132+i}, vcc")
        A(f"v_cndmask_b32 v{148+i}, v{132+i}, v156, vcc")
    for i in range(8):
        A(f"v_cvt_pk_bf16_f32 v{176+i}, v{16+2*i}, v{17+2*i}")
    for i in range(8):
        A(f"v_cvt_pk_bf16_f32 v{184+i}, v{32+2*i}, v{33+2*i}")
    A("v_mfma_f32_32x32x16_bf16 v[48:63], v[176:179], v[140:143], 0")
    A("v_mfma_f32_32x32x16_bf16 v[64:79], v[184:187], v[148:151], 0")
    A("v_mfma_f32_32x32x16_bf16 v[48:63], v[180:183], v[144:147], v[48:63]")
    A("v_mfma_f32_32x32x16_bf16 v[64:79], v[188:191], v[152:155], v[64:79]")
    A("s_barrier")
    A("s_lshl_b32 s3, s6, 13")
    A("v_lshlrev_b32 v216, 4, v1")
    A("v_add_u32 v217, s3, v216")
    for hh in range(2):
        for q in range(4):
            r = 48 + hh * 16 + q * 4
            A(f"ds_write_b128 v217, v[{r}:{r+3}] offset:{(hh*4+q)*1024}")
    A("s_waitcnt lgkmcnt(0)")
    A("s_barrier")
    A("s_lshl_b32 s3, s58, 15")
    A("s_lshl_b32 s59, s7, 11")
    A("s_add_u32 s3, s3, s59")
    A("v_add_u32 v217, s3, v216")
    for u in range(2):
        for t in range(4):
            r = 132 + (u * 4 + t) * 4
            A(f"ds_read_b128 v[{r}:{r+3}], v217 offset:{t*8192 + u*1024}")
    A("s_waitcnt lgkmcnt(0)")
    for u in range(2):
        b = 132 + u * 16
        for e in range(4):
            A(f"v_add_f32 v{b+e}, v{b+e}, v{b+4+e}")
            A(f"v_add_f32 v{b+8+e}, v{b+8+e}, v{b+12+e}")
        for e in range(4):
            A(f"v_add_f32 v{b+e}, v{b+e}, v{b+8+e}")
    A("s_lshl_b32 s3, s4, 5")
    A("s_lshl_b32 s59, s5, 2")
    A("s_add_u32 s3, s3, s59")
    A("s_lshl_b32 s59, s58, 1")
    A("s_add_u32 s3, s3, s59")
    A("s_lshl_b32 s3, s3, 12")
    A("s_lshl_b32 s59, s7, 11")
    A("s_add_u32 s3, s3, s59")
    for u in range(2):
        b = 132 + u * 16
        A(f"buffer_store_dwordx4 v[{b}:{b+3}], v216, s[28:31], s3 offen offset:{u*1024}")
    A("s_endpgm")


def dbg_dump(A, regs, wg, wave, tag):
    import os
    if not os.environ.get("DBG"):
        return
    A(f"s_cmp_lg_u32 s2, {wg}")
    A(f"s_cbranch_scc1 dbg_{tag}")
    A(f"s_cmp_lg_u32 s6, {wave}")
    A(f"s_cbranch_scc1 dbg_{tag}")
    srd(A, 96, P_WS, P_WS + 1, 65536, 0xD00000)
    A("v_lshlrev_b32 v255, 2, v1")
    for i, r in enumerate(regs):
        A(f"s_movk_i32 s95, {i*256}")
        A(f"buffer_store_dword v{r}, v255, s[96:99], s95 offen")
    A("s_waitcnt vmcnt(0)")
    A.label(f"dbg_{tag}")
    A.fence()


def k1_epi_mlp(A, L):
    dbg_dump(A, [104, 105, 106, 107, 108, 16, 17, 32, 48, 64, 68, 184], 1, 0, "m1")
    A("v_mov_b32 v132, v104")
    A("v_mov_b32 v133, v105")
    A("v_permlane32_swap_b32 v104, v132")
    A("v_permlane32_swap_b32 v105, v133")
    A("v_add_f32 v104, v104, v132")
    A("v_add_f32 v105, v105, v133")
    A(f"v_mul_f32 v104, {fbits(1/512.0)}, v104")
    A(f"v_mul_f32 v105, {fbits(1/512.0)}, v105")
    A("v_fma_f32 v105, -v104, v104, v105")
    A("v_max_f32 v105, 0, v105")
    A(f"v_add_f32 v105, {fbits(1e-5)}, v105")
    A("v_rsq_f32 v13, v105")
    A("v_mul_f32 v12, v104, v13")
    A("s_barrier")
    A("s_lshl_b32 s3, s6, 9")
    A("v_lshlrev_b32 v134, 2, v7")
    A("v_add_u32 v134, s3, v134")
    for i in range(3):
        A(f"v_mov_b32 v132, v{106+i}")
        A(f"v_permlane32_swap_b32 v{106+i}, v132")
        A(f"v_add_f32 v{106+i}, v{106+i}, v132")
        A(f"ds_write_b32 v134, v{106+i} offset:{i*128}")
    A("v_lshlrev_b32 v134, 4, v15")
    A("v_add_u32 v134, s3, v134")
    A("s_waitcnt lgkmcnt(0)")
    for i in range(3):
        for q in range(4):
            r = 64 + (i * 4 + q) * 4
            A(f"ds_read_b128 v[{r}:{r+3}], v134 offset:{i*128 + q*32}")
    k0 = -2.0 * 0.7978845608028654 * 1.4426950408889634
    A(f"s_mov_b32 s65, {fbits(k0)}")
    A(f"s_mov_b32 s66, {fbits(k0 * 0.044715)}")
    A("s_lshl_b32 s3, s4, 2")
    A("s_add_u32 s3, s3, s7")
    A("s_mul_i32 s3, s3, 86")
    A("s_mul_i32 s59, s5, 6")
    A("s_add_u32 s59, s59, s58")
    A("s_lshl_b32 s67, s59, 1")
    A("s_add_u32 s3, s3, s67")
    A("s_lshl_b32 s3, s3, 10")
    A("v_lshlrev_b32 v216, 4, v1")
    A("s_waitcnt lgkmcnt(0)")
    for i in range(3):
        A(f"s_add_u32 s67, s59, {2*i}")
        A("s_cmp_ge_u32 s67, 43")
        A(f"s_cbranch_scc1 {L}_done")
        acc = 16 + 16 * i
        for q in range(4):
            bb = 184 + (i * 4 + q) * 2
            cs = 64 + (i * 4 + q) * 4
            t = 132 + q * 4
            A(f"v_lshlrev_b32 v{t}, 16, v{bb}")
            A(f"v_and_b32 v{t+1}, 0xffff0000, v{bb}")
            A(f"v_lshlrev_b32 v{t+2}, 16, v{bb+1}")
            A(f"v_and_b32 v{t+3}, 0xffff0000, v{bb+1}")
            for e in range(4):
                A(f"v_fma_f32 v{t+e}, -v12, v{cs+e}, v{t+e}")
            for e in range(4):
                A(f"v_fma_f32 v{t+e}, v{acc+4*q+e}, v13, v{t+e}")
        for r in range(16):
            A(f"v_mul_f32 v{148+r}, v{132+r}, v{132+r}")
        A("v_mov_b32 v180, s65")
        for r in range(16):
            A(f"v_fma_f32 v{148+r}, v{148+r}, s66, v180")
        for r in range(16):
            A(f"v_mul_f32 v{148+r}, v{148+r}, v{132+r}")
        for r in range(16):
            A(f"v_exp_f32 v{148+r}, v{148+r}")
        for r in range(16):
            A(f"v_add_f32 v{148+r}, 1.0, v{148+r}")
        for r in range(16):
            A(f"v_rcp_f32 v{148+r}, v{148+r}")
        for r in range(16):
            A(f"v_mul_f32 v{148+r}, v{148+r}, v{132+r}")
        o = 164 + 8 * (i & 1)
        for r in range(8):
            A(f"v_cvt_pk_bf16_f32 v{o+r}, v{148+2*r}, v{149+2*r}")
        A(f"buffer_store_dwordx4 v[{o}:{o+3}], v216, s[24:27], s3 offen")
        A(f"buffer_store_dwordx4 v[{o+4}:{o+7}], v216, s[24:27], s3 offen offset:1024")
        A("s_add_u32 s3, s3, 4096")
    A.label(f"{L}_done")
    A("s_endpgm")


def k1(A):
    A.raw(".p2align 8")
    A.raw(".type k1_kernel,@function")
    A.label("k1_kernel")
    A("s_cmp_ge_u32 s2, 256")
    A("s_cbranch_scc1 k1_exit")
    load_kernargs(A)
    A("v_and_b32 v1, 63, v0")
    A("v_lshrrev_b32 v2, 6, v0")
    A("v_readfirstlane_b32 s6, v2")
    A("s_and_b32 s3, s2, 7")
    A("s_lshr_b32 s59, s2, 3")
    A("s_lshr_b32 s4, s3, 1")
    A("s_lshl_b32 s4, s4, 2")
    A("s_lshr_b32 s5, s59, 3")
    A("s_add_u32 s4, s4, s5")
    A("s_and_b32 s5, s59, 7")
    A("s_and_b32 s68, s3, 1")
    A("s_and_b32 s7, s6, 3")
    A("s_lshr_b32 s58, s6, 2")
    A("s_waitcnt lgkmcnt(0)")
    A("s_cmp_eq_u32 s68, 0")
    A("s_cbranch_scc0 k1_mlp")
    k1_path(A, "qkv")
    A.label("k1_mlp")
    k1_path(A, "mlp")
    A.label("k1_exit")
    A("s_endpgm")


def kred_body(A, head_sreg):
    srd(A, 8, P_WS, P_WS + 1, KVP_SIZE, KVP_OFF)
    srd(A, 12, P_WS, P_WS + 1, KVF_SIZE, KVF_OFF)
    A("v_lshlrev_b32 v1, 4, v0")
    A(f"s_lshl_b32 s3, s{head_sreg}, 12")
    for p in range(16):
        A(f"s_add_u32 s4, s3, {p * 32 * 4096}")
        A(f"buffer_load_dwordx4 v[{8+4*p}:{11+4*p}], v1, s[8:11], s4 offen")
    for p in range(1, 16):
        A(f"s_waitcnt vmcnt({15-p})")
        for e in range(4):
            A(f"v_add_f32 v{8+e}, v{8+e}, v{8+4*p+e}")
    A("v_cvt_pk_bf16_f32 v4, v8, v9")
    A("v_cvt_pk_bf16_f32 v5, v10, v11")
    A("v_lshrrev_b32 v2, 6, v0")
    A("v_and_b32 v3, 63, v0")
    A("v_lshlrev_b32 v3, 4, v3")
    A("v_lshrrev_b32 v6, 1, v2")
    A("v_lshl_add_u32 v3, v6, 10, v3")
    A("v_and_b32 v6, 1, v2")
    A("v_lshl_add_u32 v3, v6, 3, v3")
    A(f"s_lshl_b32 s3, s{head_sreg}, 11")


def kred(A):
    A.raw(".p2align 8")
    A.raw(".type kred_kernel,@function")
    A.label("kred_kernel")
    A("s_cmp_ge_u32 s2, 32")
    A("s_cbranch_scc1 kred_exit")
    load_kernargs(A)
    A("s_waitcnt lgkmcnt(0)")
    kred_body(A, 2)
    A("buffer_store_dwordx2 v[4:5], v3, s[12:15], s3 offen")
    A.label("kred_exit")
    A("s_endpgm")


K2_D = 8
K2_RING = K2_D * 2048
K2_LDS = 4 * K2_RING


def k2(A):
    D = K2_D
    A.raw(".p2align 8")
    A.raw(".type k2_kernel,@function")
    A.label("k2_kernel")
    A("s_cmp_ge_u32 s2, 256")
    A("s_cbranch_scc1 k2_exit")
    load_kernargs(A)
    A("v_and_b32 v1, 63, v0")
    A("v_lshrrev_b32 v2, 6, v0")
    A("v_readfirstlane_b32 s6, v2")
    A("s_and_b32 s3, s2, 7")
    A("s_lshr_b32 s59, s2, 3")
    A("s_lshl_b32 s4, s3, 2")
    A("s_lshr_b32 s5, s59, 3")
    A("s_add_u32 s4, s4, s5")
    A("s_and_b32 s5, s59, 7")
    A("s_waitcnt lgkmcnt(0)")
    srd(A, 8, P_W2, P_W2 + 1, 1376 * 1024)
    srd(A, 12, P_WO, P_WO + 1, 512 * 1024)
    srd(A, 16, P_WS, P_WS + 1, H_SIZE, H_OFF)
    srd(A, 20, P_WS, P_WS + 1, PHIQ_SIZE, PHIQ_OFF)
    srd(A, 24, P_WS, P_WS + 1, KVF_SIZE, KVF_OFF)
    srd(A, 28, P_WS, P_WS + 1, G_SIZE, G_OFF)
    srd(A, 60, P_B2, P_B2 + 1, 1024)
    srd(A, 64, P_OUT, P_OUT + 1, 2048 * 1024)
    A("v_and_b32 v7, 31, v1")
    A("v_lshrrev_b32 v15, 5, v1")
    A("s_lshl_b32 s3, s4, 6")
    A("v_add_u32 v2, s3, v7")
    A("v_lshlrev_b32 v2, 2, v2")
    A("buffer_load_dword v10, v2, s[28:31], 0 offen")
    A("buffer_load_dword v11, v2, s[28:31], 0 offen offset:128")
    A("s_lshr_b32 s3, s6, 1")
    A("s_lshl_b32 s3, s3, 6")
    A("s_lshl_b32 s59, s5, 7")
    A("s_add_u32 s3, s3, s59")
    A("v_lshlrev_b32 v2, 3, v15")
    A("v_add_u32 v2, s3, v2")
    for q in range(4):
        A(f"buffer_load_dwordx2 v[{240+2*q}:{241+2*q}], v2, s[60:63], 0 offen offset:{q*16}")
    A("v_bfe_u32 v2, v1, 2, 2")
    A("v_lshl_add_u32 v2, v15, 2, v2")
    A("v_lshlrev_b32 v2, 10, v2")
    A("v_bfe_u32 v3, v1, 4, 1")
    A("v_lshl_add_u32 v2, v3, 6, v2")
    A("v_and_b32 v3, 3, v1")
    A("v_lshl_add_u32 v2, v3, 4, v2")
    A("s_lshl_b32 s3, s5, 7")
    A("v_add_u32 v2, s3, v2")
    A("v_lshlrev_b32 v3, 4, v1")
    A("v_lshlrev_b32 v4, 9, v15")
    A("v_bfe_u32 v5, v1, 2, 2")
    A("v_lshl_add_u32 v4, v5, 6, v4")
    A("v_bfe_u32 v5, v1, 4, 1")
    A("v_lshl_add_u32 v4, v5, 5, v4")
    A("v_and_b32 v5, 3, v1")
    A("v_lshl_add_u32 v4, v5, 3, v4")
    A(f"s_mul_i32 s68, s6, {K2_RING}")
    A("v_add_u32 v4, s68, v4")
    A("s_lshl_b32 s3, s4, 1")
    A("s_mul_i32 s69, s3, 86")
    A("s_add_u32 s69, s69, s6")
    A("s_lshl_b32 s69, s69, 10")
    A(f"s_add_u32 s70, s69, {86*1024}")
    A("s_lshl_b32 s71, s6, 14")
    A("s_lshl_b32 s72, s3, 5")
    A("s_lshl_b32 s59, s6, 3")
    A("s_add_u32 s72, s72, s59")
    A("s_lshl_b32 s72, s72, 11")
    A(f"s_add_u32 s73, s72, {32*2048}")
    A("s_lshl_b32 s74, s6, 14")
    A("s_lshl_b32 s75, s6, 17")

    NH, NA = 22, 8
    NS = NH + NA
    ACC = 16
    BF = 80
    AF = [144, 152]
    PQ = 160
    KV = 192
    ND = 208

    vm = []

    def issue(i):
        sl = i % D
        if i < NH:
            A(f"s_add_u32 s76, s71, {i * 65536}")
            A(f"s_add_u32 m0, s68, {sl*2048}")
            A(f"buffer_load_dwordx4 v2, s[8:11], s76 offen lds")
            A(f"s_add_u32 s76, s76, 8192")
            A(f"s_add_u32 m0, s68, {sl*2048+1024}")
            A(f"buffer_load_dwordx4 v2, s[8:11], s76 offen lds")
            A(f"s_add_u32 s76, s69, {i * 4096}")
            A(f"s_add_u32 s77, s70, {i * 4096}")
            A(f"buffer_load_dwordx4 v[{BF+sl*8}:{BF+sl*8+3}], v3, s[16:19], s76 offen")
            A(f"buffer_load_dwordx4 v[{BF+sl*8+4}:{BF+sl*8+7}], v3, s[16:19], s77 offen")
            vm.extend([("s", i)] * 4)
        else:
            hh = i - NH
            A(f"s_add_u32 s76, s75, {hh * 16384}")
            A(f"s_add_u32 m0, s68, {sl*2048}")
            A(f"buffer_load_dwordx4 v2, s[12:15], s76 offen lds")
            A(f"s_add_u32 s76, s76, 8192")
            A(f"s_add_u32 m0, s68, {sl*2048+1024}")
            A(f"buffer_load_dwordx4 v2, s[12:15], s76 offen lds")
            vm.extend([("s", i)] * 2)

    def issue_attn(hh):
        pb = PQ + (hh & 1) * 16
        kb = KV + (hh & 1) * 8
        A(f"s_add_u32 s76, s72, {hh*2048}")
        A(f"s_add_u32 s77, s73, {hh*2048}")
        A(f"s_add_u32 s78, s74, {hh*2048}")
        A(f"buffer_load_dwordx4 v[{kb}:{kb+3}], v3, s[24:27], s78 offen")
        A(f"buffer_load_dwordx4 v[{kb+4}:{kb+7}], v3, s[24:27], s78 offen offset:1024")
        A(f"buffer_load_dwordx4 v[{pb}:{pb+3}], v3, s[20:23], s76 offen")
        A(f"buffer_load_dwordx4 v[{pb+4}:{pb+7}], v3, s[20:23], s76 offen offset:1024")
        A(f"buffer_load_dwordx4 v[{pb+8}:{pb+11}], v3, s[20:23], s77 offen")
        A(f"buffer_load_dwordx4 v[{pb+12}:{pb+15}], v3, s[20:23], s77 offen offset:1024")
        vm.extend([("a", hh)] * 6)

    def wait_for(tag):
        last = max(k for k, t in enumerate(vm) if t == tag)
        n = len(vm) - 1 - last
        A(f"s_waitcnt vmcnt({min(n, 63)})")

    def areads(i):
        sl = i % D
        af = AF[i & 1]
        for ft in range(2):
            for jj in range(2):
                r = af + ft * 4 + jj * 2
                A(f"ds_read_b64_tr_b16 v[{r}:{r+1}], v4 offset:{sl*2048 + jj*1024 + ft*256}")

    for i in range(D):
        issue(i)
    wait_for(("s", 0))
    areads(0)
    for i in range(NS):
        A.comment(f"step {i}")
        sl = i % D
        af = AF[i & 1]
        if i + 1 < NS:
            wait_for(("s", i + 1))
            areads(i + 1)
            A("s_waitcnt lgkmcnt(4)")
        else:
            A("s_waitcnt lgkmcnt(0)")
        if i < NH:
            b0 = BF + sl * 8
            for ft in range(2):
                for tk in range(2):
                    acc = ACC + (ft * 2 + tk) * 16
                    cin = "0" if i == 0 else f"v[{acc}:{acc+15}]"
                    A(f"v_mfma_f32_32x32x16_bf16 v[{acc}:{acc+15}], v[{af+ft*4}:{af+ft*4+3}], v[{b0+tk*4}:{b0+tk*4+3}], {cin}")
        else:
            hh = i - NH
            pb = PQ + (hh & 1) * 16
            kb = KV + (hh & 1) * 8
            wait_for(("a", hh))
            for tk in range(2):
                nd = ND + tk * 16
                A(f"v_mfma_f32_32x32x16_bf16 v[{nd}:{nd+15}], v[{kb}:{kb+3}], v[{pb+tk*8}:{pb+tk*8+3}], 0")
                A(f"v_mfma_f32_32x32x16_bf16 v[{nd}:{nd+15}], v[{kb+4}:{kb+7}], v[{pb+tk*8+4}:{pb+tk*8+7}], v[{nd}:{nd+15}]")
            for tk in range(2):
                nd = ND + tk * 16
                num, den = (nd, nd + 8) if hh % 2 == 0 else (nd + 8, nd)
                A(f"v_add_f32 v{den}, {fbits(1e-6)}, v{den}")
                A(f"v_rcp_f32 v{den}, v{den}")
                A(f"v_mul_f32 v{den}, v{den}, v{10+tk}")
                for e in range(8):
                    A(f"v_mul_f32 v{num+e}, v{num+e}, v{den}")
                ob = BF + tk * 4
                for e in range(4):
                    A(f"v_cvt_pk_bf16_f32 v{ob+e}, v{num+2*e}, v{num+2*e+1}")
            for ft in range(2):
                for tk in range(2):
                    acc = ACC + (ft * 2 + tk) * 16
                    A(f"v_mfma_f32_32x32x16_bf16 v[{acc}:{acc+15}], v[{af+ft*4}:{af+ft*4+3}], v[{BF+tk*4}:{BF+tk*4+3}], v[{acc}:{acc+15}]")
            if hh + 2 < NA:
                issue_attn(hh + 2)
        if i + D < NS:
            issue(i + D)
        if i == NH - 3:
            issue_attn(0)
        if i == NH - 2:
            issue_attn(1)
        if i == NH - 1:
            A("v_sub_f32 v12, 1.0, v10")
            A("v_sub_f32 v13, 1.0, v11")
            for ft in range(2):
                for tk in range(2):
                    acc = ACC + (ft * 2 + tk) * 16
                    for e in range(16):
                        A(f"v_mul_f32 v{acc+e}, v{acc+e}, v{12+tk}")
    A("s_barrier")
    for t in range(4):
        A(f"s_cmp_eq_u32 s6, {t}")
        A(f"s_cbranch_scc1 k2_sk{t}")
        A(f"s_sub_u32 s3, s6, {t+1}")
        A("s_and_b32 s3, s3, 3")
        A("s_lshl_b32 s3, s3, 12")
        A(f"s_add_u32 s3, s3, {t*12288}")
        A("v_add_u32 v5, s3, v3")
        for q in range(4):
            r = ACC + t * 16 + q * 4
            A(f"ds_write_b128 v5, v[{r}:{r+3}] offset:{q*1024}")
        A.label(f"k2_sk{t}")
    A("s_waitcnt lgkmcnt(0)")
    A("s_barrier")
    A("s_mul_i32 s3, s6, 12288")
    A("v_add_u32 v5, s3, v3")
    for k in range(12):
        A(f"ds_read_b128 v[{80+4*k}:{83+4*k}], v5 offset:{k*1024}")
    for t in range(4):
        A(f"s_cmp_lg_u32 s6, {t}")
        A(f"s_cbranch_scc1 k2_mv{t}")
        for e in range(16):
            A(f"v_mov_b32 v{144+e}, v{ACC+t*16+e}")
        A(f"v_mov_b32 v14, v{12+(t&1)}")
        A.label(f"k2_mv{t}")
    A("s_waitcnt lgkmcnt(0)")
    for k in range(3):
        for e in range(16):
            A(f"v_add_f32 v{144+e}, v{144+e}, v{80+16*k+e}")
    for q in range(4):
        bb = 240 + 2 * q
        A(f"v_lshlrev_b32 v80, 16, v{bb}")
        A(f"v_and_b32 v81, 0xffff0000, v{bb}")
        A(f"v_lshlrev_b32 v82, 16, v{bb+1}")
        A(f"v_and_b32 v83, 0xffff0000, v{bb+1}")
        for e in range(4):
            A(f"v_fma_f32 v{144+4*q+e}, v{80+e}, v14, v{144+4*q+e}")
    for r in range(8):
        A(f"v_cvt_pk_bf16_f32 v{160+r}, v{144+2*r}, v{145+2*r}")
    A("v_permlane32_swap_b32 v160, v162")
    A("v_permlane32_swap_b32 v161, v163")
    A("v_permlane32_swap_b32 v164, v166")
    A("v_permlane32_swap_b32 v165, v167")
    A("s_lshl_b32 s3, s4, 6")
    A("s_and_b32 s59, s6, 1")
    A("s_lshl_b32 s59, s59, 5")
    A("s_add_u32 s3, s3, s59")
    A("v_add_u32 v5, s3, v7")
    A("v_lshlrev_b32 v5, 10, v5")
    A("v_lshl_add_u32 v5, v15, 4, v5")
    A("s_lshl_b32 s3, s5, 7")
    A("s_lshr_b32 s59, s6, 1")
    A("s_lshl_b32 s59, s59, 6")
    A("s_add_u32 s3, s3, s59")
    A("buffer_store_dwordx4 v[160:163], v5, s[64:67], s3 offen")
    A("buffer_store_dwordx4 v[164:167], v5, s[64:67], s3 offen offset:32")
    A.label("k2_exit")
    A("s_endpgm")


HEADER = open("cdna_kernels/" + NAME + ".s.ref").read().split("; Override")[0]


def kd(name, vgpr, sgpr=102):
    return f""".amdhsa_kernel {name}
  .amdhsa_next_free_vgpr {vgpr}
  .amdhsa_next_free_sgpr {sgpr}
  .amdhsa_accum_offset {vgpr}
  .amdhsa_group_segment_fixed_size 0
  .amdhsa_kernarg_size 104
  .amdhsa_user_sgpr_count 2
  .amdhsa_user_sgpr_kernarg_segment_ptr 1
  .amdhsa_system_sgpr_workgroup_id_x 1
.end_amdhsa_kernel
"""


def main():
    out = HEADER
    out += f"; @launch kernel=k1_kernel grid=(256,1,1) block=(512,1,1) lds={K1_LDS}\n"
    out += f"; @launch kernel=kred_kernel grid=(32,1,1) block=(256,1,1) lds=0\n"
    out += f"; @launch kernel=k2_kernel grid=(256,1,1) block=(256,1,1) lds={K2_LDS}\n"
    out += '.amdgcn_target "amdgcn-amd-amdhsa--gfx950"\n.text\n'
    for name, fn in (("k1_kernel", k1), ("kred_kernel", kred), ("k2_kernel", k2)):
        A = Asm()
        out += f".globl {name}\n"
        fn(A)
        out += A.finish()
    out += '.section .rodata,"a"\n'
    for name, vg in (("k1_kernel", 256), ("kred_kernel", 80), ("k2_kernel", 256)):
        out += ".p2align 6\n" + kd(name, vg)
    path = sys.argv[1] if len(sys.argv) > 1 else "cdna_kernels/" + NAME + ".s"
    open(path, "w").write(out)
    print("wrote", path, len(out))


if __name__ == "__main__":
    main()
```

```python
import sys
from asmlib import Asm, vr, sr

NAME = "gated_mix__linear_kernel_hedgehog__mixer_channel_mlp__prompt"

H_OFF, H_SIZE = 0, 64 * 86 * 1024
PHIQ_OFF, PHIQ_SIZE = 0x600000, 0x400000
KVP_OFF, KVP_SIZE = 0xA00000, 0x200000
KVF_OFF, KVF_SIZE = 0xC00000, 0x10000
G_OFF, G_SIZE = 0xC10000, 0x2000

L2E = 0x3FB8AA3B
ONES = 0x3F803F80


def fbits(x):
    import struct
    return struct.unpack("<I", struct.pack("<f", x))[0]


def srd(A, d, lo, hi, size, off=0):
    if off:
        A(f"s_add_u32 s{d}, s{lo}, {off}")
        A(f"s_addc_u32 s{d+1}, s{hi}, 0")
    else:
        A(f"s_mov_b32 s{d}, s{lo}")
        A(f"s_mov_b32 s{d+1}, s{hi}")
    A(f"s_mov_b32 s{d+2}, {size}")
    A(f"s_mov_b32 s{d+3}, 0x00020000")


def load_kernargs(A):
    A("s_load_dwordx16 s[32:47], s[0:1], 0")
    A("s_load_dwordx8 s[48:55], s[0:1], 64")
    A("s_load_dwordx2 s[56:57], s[0:1], 96")


P_AX, P_WQKV, P_WPHI, P_WO, P_BX, P_W1, P_B1, P_W2 = 32, 34, 36, 38, 40, 42, 44, 46
P_B2, P_GW, P_OUT, P_DBG, P_WS = 48, 50, 52, 54, 56

K1_WB = [0, 24576, 49152]
K1_XB = [73728, 90112, 106496]
K1_GATE = 122880
K1_LDS = 124928


def k1_path(A, typ):
    qkv = typ == "qkv"
    stride = 3072 if qkv else 2752
    sec = 1024 if qkv else 128
    L = "k1q" if qkv else "k1m"
    if qkv:
        srd(A, 8, P_AX, P_AX + 1, 2048 * 1024)
        srd(A, 12, P_WQKV, P_WQKV + 1, 512 * 3072)
        srd(A, 16, P_WPHI, P_WPHI + 1, 32 * 512)
        srd(A, 24, P_WS, P_WS + 1, PHIQ_SIZE, PHIQ_OFF)
        srd(A, 28, P_WS, P_WS + 1, KVP_SIZE, KVP_OFF)
    else:
        srd(A, 8, P_AX, P_AX + 1, 2048 * 1024)
        srd(A, 12, P_W1, P_W1 + 1, 512 * 2752)
        srd(A, 16, P_B1, P_B1 + 1, 2752)
        srd(A, 24, P_WS, P_WS + 1, H_SIZE, H_OFF)
    A("v_and_b32 v7, 31, v1")
    A("v_lshrrev_b32 v15, 5, v1")
    if qkv:
        A("s_lshl_b32 s3, s5, 2")
        A("s_lshl_b32 s59, s58, 1")
        A("s_add_u32 s3, s3, s59")
        A("v_lshrrev_b32 v132, 4, v7")
        A("v_add_u32 v132, s3, v132")
        A("v_lshlrev_b32 v132, 9, v132")
        A("v_and_b32 v133, 15, v7")
        A("v_lshl_add_u32 v132, v133, 1, v132")
        A("v_lshl_add_u32 v132, v15, 7, v132")
        for j in range(8):
            d = (j & 3) + 8 * (j >> 2)
            A(f"buffer_load_ushort v{140 + j}, v132, s[16:19], 0 offen offset:{d * 32}")
    else:
        srd(A, 20, P_GW, P_GW + 1, 1024)
        A("v_lshlrev_b32 v133, 4, v1")
        A("s_cmp_lg_u32 s6, 0")
        A(f"s_cbranch_scc1 {L}_nogate")
        A(f"s_mov_b32 m0, {K1_GATE}")
        A("buffer_load_dwordx4 v133, s[20:23], 0 offen lds")
        A.label(f"{L}_nogate")
        A("s_cmp_lg_u32 s6, 1")
        A(f"s_cbranch_scc1 {L}_noones")
        for k in range(4):
            A(f"v_mov_b32 v{136 + k}, {ONES}")
        A(f"v_add_u32 v134, {K1_GATE + 1024}, v133")
        A("ds_write_b128 v134, v[136:139]")
        A("s_waitcnt lgkmcnt(0)")
        A.label(f"{L}_noones")
        A("s_nop 1")
        A("s_mul_i32 s3, s5, 6")
        A("s_add_u32 s3, s3, s58")
        A("s_lshl_b32 s3, s3, 6")
        A("v_lshlrev_b32 v132, 3, v15")
        A("v_add_u32 v132, s3, v132")
        for i in range(3):
            for q in range(4):
                r = 184 + (i * 4 + q) * 2
                A(f"buffer_load_dwordx2 v[{r}:{r+1}], v132, s[16:19], 0 offen offset:{i * 128 + q * 16}")
    A("v_lshrrev_b32 v132, 3, v1")
    A("s_lshl_b32 s3, s4, 7")
    A("s_lshl_b32 s59, s6, 4")
    A("s_add_u32 s3, s3, s59")
    A("v_add_u32 v132, s3, v132")
    A("v_lshlrev_b32 v132, 10, v132")
    A("v_and_b32 v133, 7, v1")
    A("v_lshrrev_b32 v134, 4, v1")
    A("v_xor_b32 v135, v133, v134")
    A("v_lshl_add_u32 v2, v135, 4, v132")
    A("v_xor_b32 v135, 4, v135")
    A("v_lshl_add_u32 v3, v135, 4, v132")
    A("v_add_u32 v3, 8192, v3")
    A("v_bfe_u32 v132, v1, 2, 2")
    A("s_lshl_b32 s3, s6, 3")
    A("v_add_u32 v132, s3, v132")
    A(f"s_mov_b32 s59, {stride}")
    A("v_mul_lo_u32 v132, v132, s59")
    A("v_and_b32 v133, 3, v1")
    A("v_lshl_add_u32 v132, v133, 4, v132")
    A(f"s_mul_i32 s3, s5, {128 if qkv else 384}")
    A("v_add_u32 v132, s3, v132")
    A("v_lshrrev_b32 v134, 4, v1")

    def colbytes(dst, ttreg):
        A(f"v_lshrrev_b32 v136, 1, v{ttreg}")
        A(f"v_mul_u32_u24 v136, {sec}, v136")
        A(f"v_and_b32 v137, 1, v{ttreg}")
        A(f"v_lshl_add_u32 v136, v137, 6, v136")
        A(f"v_add_u32 v{dst}, v132, v136")
    colbytes(4, 134)
    A("v_add_u32 v135, 4, v134")
    A("v_subrev_u32 v138, 2, v134")
    A("v_cmp_gt_u32 vcc, 32, v1")
    A("v_cndmask_b32 v135, v138, v135, vcc")
    colbytes(5, 135)
    A(f"v_mov_b32 v138, {4 * stride}")
    A("v_cndmask_b32 v138, v138, 0, vcc")
    A("v_add_u32 v5, v5, v138")
    A("v_add_u32 v135, 2, v134")
    colbytes(6, 135)
    A(f"v_add_u32 v6, {4 * stride}, v6")
    A("s_lshl_b32 s60, s6, 11")
    A(f"s_add_u32 s60, s60, {K1_XB[0]}")
    A("s_mul_i32 s61, s6, 3072")

    def dma(c):
        b = c % 3
        A(f"s_mov_b32 s62, {c * 128}")
        A(f"s_mov_b32 s63, {c * 64 * stride}")
        for i in range(2):
            A(f"s_add_u32 m0, s60, {b * 16384 + i * 1024}")
            A(f"buffer_load_dwordx4 v{2 + i}, s[8:11], s62 offen lds")
        for i in range(3):
            A(f"s_add_u32 m0, s61, {b * 24576 + i * 1024}")
            A(f"buffer_load_dwordx4 v{4 + i}, s[12:15], s63 offen lds")
    dma(0)
    dma(1)
    A("s_lshl_b32 s3, s7, 5")
    A("v_add_u32 v132, s3, v7")
    A("v_lshlrev_b32 v132, 7, v132")
    A(f"v_add_u32 v132, {K1_XB[0]}, v132")
    A("v_bfe_u32 v133, v7, 1, 3")
    A("v_xor_b32 v133, v133, v15")
    for s in range(4):
        A(f"v_xor_b32 v134, {2 * s}, v133")
        A(f"v_lshl_add_u32 v{8 + s}, v134, 4, v132")
    A("v_mul_u32_u24 v12, 3072, v15")
    A("v_bfe_u32 v132, v1, 2, 2")
    A("v_lshl_add_u32 v12, v132, 6, v12")
    A("v_bfe_u32 v132, v1, 4, 1")
    A("v_lshl_add_u32 v12, v132, 5, v12")
    A("v_and_b32 v132, 3, v1")
    A("v_lshl_add_u32 v12, v132, 3, v12")
    A("s_lshl_b32 s3, s58, 8")
    A("v_add_u32 v12, s3, v12")
    A("v_add_u32 v13, 49152, v12")
    if qkv:
        A("v_lshlrev_b32 v132, 2, v15")
        A("v_sub_u32 v132, v7, v132")
        for sg in range(2):
            for p in range(4):
                f0 = ((2 * p) & 3) + 8 * ((2 * p) >> 2) + 16 * sg
                dst = 124 + sg * 4 + p
                A(f"v_cmp_eq_u32 vcc, {f0}, v132")
                A(f"v_mov_b32 v133, 0x3f80")
                A(f"v_cndmask_b32 v{dst}, 0, v133, vcc")
                A(f"v_cmp_eq_u32 vcc, {f0 + 1}, v132")
                A(f"v_mov_b32 v133, 0x3f800000")
                A(f"v_cndmask_b32 v133, 0, v133, vcc")
                A(f"v_or_b32 v{dst}, v{dst}, v133")
    else:
        A("v_and_b32 v132, 15, v1")
        A("s_lshl_b32 s3, s6, 4")
        A("v_add_u32 v132, s3, v132")
        A("v_bfe_u32 v133, v132, 1, 3")
        A("v_lshrrev_b32 v134, 4, v1")
        A("v_xor_b32 v133, v133, v134")
        A("v_lshlrev_b32 v132, 7, v132")
        A("v_lshl_add_u32 v14, v133, 4, v132")
        A(f"v_add_u32 v14, {K1_XB[0]}, v14")
        A("v_xor_b32 v109, 64, v14")
        A("v_and_b32 v132, 15, v1")
        A("v_cmp_eq_u32 vcc, 1, v132")
        A(f"v_mov_b32 v133, {K1_GATE + 1024}")
        A(f"v_mov_b32 v135, {K1_GATE}")
        A("v_cndmask_b32 v133, v133, v135, vcc")
        A("v_lshl_add_u32 v110, v134, 4, v133")
        A("v_and_b32 v132, 31, v1")
        A("v_cmp_eq_u32 vcc, 0, v132")
        A(f"v_mov_b32 v133, {ONES}")
        A("v_cndmask_b32 v220, 0, v133, vcc")
        A("v_cmp_eq_u32 vcc, 17, v132")
        A("v_cndmask_b32 v220, v220, v133, vcc")
        for k in range(1, 4):
            A(f"v_mov_b32 v{220 + k}, v220")
        for r in list(range(120, 128)) + list(range(208, 220)):
            A(f"v_mov_b32 v{r}, 0")
    A(f"s_mov_b32 s64, {ONES}")
    XF = [64, 80]
    WF = [68, 84]
    lg = []

    def lds(tag, text):
        A(text)
        lg.append(tag)

    def wait_lg(tag):
        last = max(k for k, t in enumerate(lg) if t == tag)
        A(f"s_waitcnt lgkmcnt({len(lg) - 1 - last})")

    def reads(st, c, s):
        b = c % 3
        lds(("f", c, s), f"ds_read_b128 v[{XF[st]}:{XF[st]+3}], v{8 + s} offset:{b * 16384}")
        base, imm0 = (12, b * 24576) if b < 2 else (13, 0)
        for i in range(3):
            for jj in range(2):
                r = WF[st] + i * 4 + jj * 2
                lds(("f", c, s), f"ds_read_b64_tr_b16 v[{r}:{r+1}], v{base} offset:{imm0 + s * 6144 + jj * 1536 + i * 512}")

    def dma_piece(c, k):
        b = c % 3
        if k < 2:
            A(f"s_add_u32 m0, s60, {b * 16384 + k * 1024}")
            A(f"buffer_load_dwordx4 v{2 + k}, s[8:11], s62 offen lds")
        else:
            i = k - 2
            A(f"s_add_u32 m0, s61, {b * 24576 + i * 1024}")
            A(f"buffer_load_dwordx4 v{4 + i}, s[12:15], s63 offen lds")

    for c in range(8):
        A.comment(f"chunk {c}")
        A(f"s_waitcnt vmcnt({5 if c < 7 else 0})")
        A("s_barrier")
        if c in (0, 1, 4):
            stamp(A, {0: 1, 1: 2, 4: 3}[c])
        reads(0, c, 0)
        if not qkv:
            b = c % 3
            lds(("x", c, 0), f"ds_read_b128 v[96:99], v14 offset:{b * 16384}")
            lds(("x", c, 0), f"ds_read_b128 v[112:115], v110 offset:{c * 128}")
            lds(("x", c, 1), f"ds_read_b128 v[100:103], v109 offset:{b * 16384}")
            lds(("x", c, 1), f"ds_read_b128 v[116:119], v110 offset:{c * 128 + 64}")
        if c + 2 < 8:
            A(f"s_mov_b32 s62, {(c + 2) * 128}")
            A(f"s_mov_b32 s63, {(c + 2) * 64 * stride}")
        for s in range(4):
            st = s & 1
            if s < 3:
                reads(st ^ 1, c, s + 1)
            wait_lg(("f", c, s))
            x = f"v[{XF[st]}:{XF[st]+3}]"
            first = (c == 0 and s == 0)
            for i in range(3):
                acc = f"v[{16 + 16 * i}:{31 + 16 * i}]"
                w = f"v[{WF[st] + 4 * i}:{WF[st] + 4 * i + 3}]"
                cin = "0" if first else acc
                if qkv and i == 2:
                    A(f"v_mfma_f32_32x32x16_bf16 {acc}, {x}, {w}, {cin}")
                else:
                    A(f"v_mfma_f32_32x32x16_bf16 {acc}, {w}, {x}, {cin}")
                if i == 0 and c + 2 < 8:
                    dma_piece(c + 2, s)
            if not qkv:
                if s in (1, 2):
                    kh = s - 1
                    xs, ax = 96 + 4 * kh, 112 + 4 * kh
                    A(f"v_mfma_f32_16x16x32_bf16 v[120:123], v[{xs}:{xs+3}], v[{xs}:{xs+3}], v[120:123]")
                    A(f"v_mfma_f32_16x16x32_bf16 v[124:127], v[{ax}:{ax+3}], v[{xs}:{xs+3}], v[124:127]")
                A(f"s_cmp_lg_u32 s7, {s}")
                A(f"s_cbranch_scc1 {L}_cs{c}_{s}")
                for i in range(3):
                    cs = 208 + 4 * i
                    A(f"v_mfma_f32_16x16x32_bf16 v[{cs}:{cs+3}], v[220:223], v[{WF[st]+4*i}:{WF[st]+4*i+3}], v[{cs}:{cs+3}]")
                A.label(f"{L}_cs{c}_{s}")
            if s == 3 and c + 2 < 8:
                dma_piece(c + 2, 4)
    A.fence()
    stamp(A, 4)
    if qkv:
        k1_epi_qkv(A, L)
    else:
        k1_epi_mlp(A, L)


def softmax_head(A, p, outp, outm, t):
    M, N, C, D = t, t + 1, t + 2, t + 3
    ep, em = t + 4, t + 12
    A(f"v_max3_f32 v{M}, v{p}, v{p+1}, v{p+2}")
    A(f"v_max3_f32 v{N}, -v{p}, -v{p+1}, -v{p+2}")
    A(f"v_max3_f32 v{M}, v{M}, v{p+3}, v{p+4}")
    A(f"v_max3_f32 v{N}, v{N}, -v{p+3}, -v{p+4}")
    A(f"v_max3_f32 v{M}, v{M}, v{p+5}, v{p+6}")
    A(f"v_max3_f32 v{N}, v{N}, -v{p+5}, -v{p+6}")
    A(f"v_max_f32 v{M}, v{M}, v{p+7}")
    A(f"v_max_f32_e64 v{N}, v{N}, -v{p+7}")
    A(f"v_permlane32_swap_b32 v{M}, v{N}")
    A(f"v_max_f32 v{C}, v{M}, v{N}")
    A(f"v_mul_f32 v{C}, s65, v{C}")
    A(f"v_mov_b32 v{D}, v{C}")
    A(f"v_permlane32_swap_b32 v{C}, v{D}")
    for i in range(8):
        A(f"v_fma_f32 v{ep+i}, v{p+i}, s65, -v{C}")
        A(f"v_fma_f32 v{em+i}, -v{p+i}, s65, -v{D}")
    for i in range(8):
        A(f"v_exp_f32 v{ep+i}, v{ep+i}")
        A(f"v_exp_f32 v{em+i}, v{em+i}")
    A(f"v_add_f32 v{M}, v{ep}, v{ep+1}")
    A(f"v_add_f32 v{N}, v{em}, v{em+1}")
    for i in range(2, 8):
        A(f"v_add_f32 v{M}, v{M}, v{ep+i}")
        A(f"v_add_f32 v{N}, v{N}, v{em+i}")
    A(f"v_permlane32_swap_b32 v{M}, v{N}")
    A(f"v_add_f32 v{C}, v{M}, v{N}")
    A(f"v_rcp_f32 v{C}, v{C}")
    A(f"v_mov_b32 v{D}, v{C}")
    A(f"v_permlane32_swap_b32 v{C}, v{D}")
    for i in range(8):
        A(f"v_mul_f32 v{ep+i}, v{ep+i}, v{C}")
        A(f"v_mul_f32 v{em+i}, v{em+i}, v{D}")
    for i in range(4):
        A(f"v_cvt_pk_bf16_f32 v{outp+i}, v{ep+2*i}, v{ep+2*i+1}")
        A(f"v_cvt_pk_bf16_f32 v{outm+i}, v{em+2*i}, v{em+2*i+1}")


def feature_map(A, acc, out):
    for i in range(8):
        A(f"v_cvt_pk_bf16_f32 v{132+i}, v{acc+2*i}, v{acc+2*i+1}")
    A("v_mfma_f32_32x32x16_bf16 v[140:155], v[116:119], v[132:135], 0")
    A("v_mfma_f32_32x32x16_bf16 v[140:155], v[120:123], v[136:139], v[140:155]")
    softmax_head(A, 140, out, out + 4, 176)
    softmax_head(A, 148, out + 8, out + 12, 196)


def k1_epi_qkv(A, L):
    A(f"s_mov_b32 s65, {L2E}")
    for i in range(4):
        A(f"v_lshl_or_b32 v{112+i}, v{141+2*i}, 16, v{140+2*i}")
    A("v_cmp_gt_u32 vcc, 16, v7")
    for i in range(4):
        A(f"v_cndmask_b32 v{116+i}, 0, v{112+i}, vcc")
        A(f"v_cndmask_b32 v{120+i}, v{112+i}, 0, vcc")
    A.fence()
    feature_map(A, 16, 160)
    A("s_lshl_b32 s3, s4, 2")
    A("s_add_u32 s3, s3, s7")
    A("s_lshl_b32 s3, s3, 5")
    A("s_lshl_b32 s59, s5, 2")
    A("s_add_u32 s3, s3, s59")
    A("s_lshl_b32 s59, s58, 1")
    A("s_add_u32 s3, s3, s59")
    A("s_lshl_b32 s3, s3, 11")
    A("v_lshlrev_b32 v216, 4, v1")
    for i in range(4):
        A(f"buffer_store_dwordx4 v[{160+4*i}:{163+4*i}], v216, s[24:27], s3 offen offset:{i*1024}")
    feature_map(A, 32, 220)
    A("v_mfma_f32_32x32x16_bf16 v[16:31], v[220:223], v[124:127], 0")
    A("v_mfma_f32_32x32x16_bf16 v[32:47], v[228:231], v[124:127], 0")
    A("v_mfma_f32_32x32x16_bf16 v[16:31], v[224:227], v[128:131], v[16:31]")
    A("v_mfma_f32_32x32x16_bf16 v[32:47], v[232:235], v[128:131], v[32:47]")
    for i in range(8):
        A(f"v_cvt_pk_bf16_f32 v{132+i}, v{48+2*i}, v{49+2*i}")
    A("v_cmp_gt_u32 vcc, 16, v7")
    A("v_mov_b32 v156, s64")
    for i in range(8):
        A(f"v_cndmask_b32 v{140+i}, v156, v{132+i}, vcc")
        A(f"v_cndmask_b32 v{148+i}, v{132+i}, v156, vcc")
    for i in range(8):
        A(f"v_cvt_pk_bf16_f32 v{176+i}, v{16+2*i}, v{17+2*i}")
    for i in range(8):
        A(f"v_cvt_pk_bf16_f32 v{184+i}, v{32+2*i}, v{33+2*i}")
    A("v_mfma_f32_32x32x16_bf16 v[48:63], v[176:179], v[140:143], 0")
    A("v_mfma_f32_32x32x16_bf16 v[64:79], v[184:187], v[148:151], 0")
    A("v_mfma_f32_32x32x16_bf16 v[48:63], v[180:183], v[144:147], v[48:63]")
    A("v_mfma_f32_32x32x16_bf16 v[64:79], v[188:191], v[152:155], v[64:79]")
    A("s_barrier")
    A("s_lshl_b32 s3, s6, 13")
    A("v_lshlrev_b32 v216, 4, v1")
    A("v_add_u32 v217, s3, v216")
    for hh in range(2):
        for q in range(4):
            r = 48 + hh * 16 + q * 4
            A(f"ds_write_b128 v217, v[{r}:{r+3}] offset:{(hh*4+q)*1024}")
    A("s_waitcnt lgkmcnt(0)")
    A("s_barrier")
    A("s_lshl_b32 s3, s58, 15")
    A("s_lshl_b32 s59, s7, 11")
    A("s_add_u32 s3, s3, s59")
    A("v_add_u32 v217, s3, v216")
    for u in range(2):
        for t in range(4):
            r = 132 + (u * 4 + t) * 4
            A(f"ds_read_b128 v[{r}:{r+3}], v217 offset:{t*8192 + u*1024}")
    A("s_waitcnt lgkmcnt(0)")
    for u in range(2):
        b = 132 + u * 16
        for e in range(4):
            A(f"v_add_f32 v{b+e}, v{b+e}, v{b+4+e}")
            A(f"v_add_f32 v{b+8+e}, v{b+8+e}, v{b+12+e}")
        for e in range(4):
            A(f"v_add_f32 v{b+e}, v{b+e}, v{b+8+e}")
    A("s_lshl_b32 s3, s4, 5")
    A("s_lshl_b32 s59, s5, 2")
    A("s_add_u32 s3, s3, s59")
    A("s_lshl_b32 s59, s58, 1")
    A("s_add_u32 s3, s3, s59")
    A("s_lshl_b32 s3, s3, 12")
    A("s_lshl_b32 s59, s7, 11")
    A("s_add_u32 s3, s3, s59")
    for u in range(2):
        b = 132 + u * 16
        A(f"buffer_store_dwordx4 v[{b}:{b+3}], v216, s[28:31], s3 offen offset:{u*1024}")
    stamp(A, 5)
    A("s_waitcnt vmcnt(0)")
    stamp(A, 6)
    stamp_out(A, 7, 0, L)
    A("s_endpgm")


import os
STAMP = bool(os.environ.get("STAMP"))


def stamp(A, k):
    if not STAMP:
        return
    A(f"s_memtime s[{80+2*k}:{81+2*k}]")
    A("s_waitcnt lgkmcnt(0)")


def stamp_out(A, n, region, tag):
    if not STAMP:
        return
    A("s_cmp_lg_u32 s6, 0")
    A(f"s_cbranch_scc1 st_{tag}")
    srd(A, 96, P_WS, P_WS + 1, 65536, 0xE00000 + region * 65536)
    A("s_lshl_b32 s95, s2, 6")
    for k in range(n):
        A(f"v_mov_b32 v255, s{80+2*k}")
        A(f"v_mov_b32 v254, 0")
        A(f"buffer_store_dword v255, v254, s[96:99], s95 offen offset:{4*k}")
    A.label(f"st_{tag}")


def dbg_dump(A, regs, wg, wave, tag):
    import os
    if not os.environ.get("DBG"):
        return
    A(f"s_cmp_lg_u32 s2, {wg}")
    A(f"s_cbranch_scc1 dbg_{tag}")
    A(f"s_cmp_lg_u32 s6, {wave}")
    A(f"s_cbranch_scc1 dbg_{tag}")
    srd(A, 96, P_WS, P_WS + 1, 65536, 0xD00000)
    A("v_lshlrev_b32 v255, 2, v1")
    for i, r in enumerate(regs):
        A(f"s_movk_i32 s95, {i*256}")
        A(f"buffer_store_dword v{r}, v255, s[96:99], s95 offen")
    A("s_waitcnt vmcnt(0)")
    A.label(f"dbg_{tag}")
    A.fence()


def k1_epi_mlp(A, L):
    A("v_and_b32 v132, 15, v1")
    A("v_and_b32 v133, 3, v1")
    A("v_mov_b32 v134, v120")
    for r in range(1, 4):
        A(f"v_cmp_eq_u32 vcc, {r}, v133")
        A(f"v_cndmask_b32 v134, v134, v{120 + r}, vcc")
    A("s_lshl_b32 s3, s6, 4")
    A("v_add_u32 v135, s3, v132")
    A("v_lshlrev_b32 v135, 3, v135")
    A("v_lshlrev_b32 v136, 2, v1")
    A("v_add_u32 v136, 1024, v136")
    A("v_lshrrev_b32 v137, 4, v1")
    A("v_bfe_u32 v138, v1, 2, 2")
    A("v_cmp_eq_u32 vcc, v137, v138")
    A("v_cndmask_b32 v139, v136, v135, vcc")
    A("ds_write_b32 v139, v134 offset:4")
    A("v_cmp_gt_u32 vcc, 16, v1")
    A("v_cndmask_b32 v139, v136, v135, vcc")
    A("ds_write_b32 v139, v124")
    A("s_mul_i32 s3, s6, 384")
    A("s_add_u32 s3, s3, 2048")
    A("v_lshl_add_u32 v139, v132, 2, s3")
    A("v_cndmask_b32 v139, v136, v139, vcc")
    for i in range(3):
        A(f"ds_write_b32 v139, v{208 + 4 * i} offset:{i * 128}")
        A(f"ds_write_b32 v139, v{209 + 4 * i} offset:{i * 128 + 64}")
    A(f"s_mov_b32 s65, {L2E}")
    A("v_mul_f32 v125, s65, v125")
    A("v_exp_f32 v125, -v125")
    A("v_add_f32 v125, 1.0, v125")
    A("v_rcp_f32 v125, v125")
    A("s_cmp_lg_u32 s5, 0")
    A(f"s_cbranch_scc1 {L}_nog")
    srd(A, 20, P_WS, P_WS + 1, G_SIZE, G_OFF)
    A("s_lshl_b32 s3, s4, 7")
    A("s_lshl_b32 s59, s6, 4")
    A("s_add_u32 s3, s3, s59")
    A("v_add_u32 v139, s3, v132")
    A("v_lshlrev_b32 v139, 2, v139")
    A("v_mov_b32 v140, 0x100000")
    A("v_cndmask_b32 v139, v140, v139, vcc")
    A("buffer_store_dword v125, v139, s[20:23], 0 offen")
    A.label(f"{L}_nog")
    A("s_waitcnt lgkmcnt(0)")
    A("s_barrier")
    A("s_lshl_b32 s3, s7, 5")
    A("v_add_u32 v134, s3, v7")
    A("v_lshlrev_b32 v134, 3, v134")
    A("ds_read_b64 v[104:105], v134")
    A("v_min_u32 v135, 47, v1")
    A("v_lshlrev_b32 v135, 3, v135")
    A("s_mul_i32 s3, s58, 1536")
    A("v_add_u32 v136, s3, v135")
    for t in range(4):
        A(f"ds_read_b64 v[{140 + 2 * t}:{141 + 2 * t}], v136 offset:{2048 + t * 384}")
    A("s_waitcnt lgkmcnt(0)")
    A("v_add_f32 v140, v140, v142")
    A("v_add_f32 v141, v141, v143")
    A("v_add_f32 v144, v144, v146")
    A("v_add_f32 v145, v145, v147")
    A("v_add_f32 v140, v140, v144")
    A("v_add_f32 v141, v141, v145")
    A("s_lshl_b32 s3, s6, 9")
    A("s_add_u32 s3, s3, 8192")
    A("v_add_u32 v136, s3, v135")
    A("ds_write_b64 v136, v[140:141]")
    A(f"v_mul_f32 v104, {fbits(1/512.0)}, v104")
    A(f"v_mul_f32 v105, {fbits(1/512.0)}, v105")
    A("v_fma_f32 v105, -v104, v104, v105")
    A("v_max_f32 v105, 0, v105")
    A(f"v_add_f32 v105, {fbits(1e-5)}, v105")
    A("v_rsq_f32 v13, v105")
    A("v_mul_f32 v12, v104, v13")
    A("v_lshlrev_b32 v134, 4, v15")
    A("v_add_u32 v134, s3, v134")
    A("s_waitcnt lgkmcnt(0)")
    for i in range(3):
        for q in range(4):
            r = 64 + (i * 4 + q) * 4
            A(f"ds_read_b128 v[{r}:{r+3}], v134 offset:{i*128 + q*32}")
    k0 = -2.0 * 0.7978845608028654 * 1.4426950408889634
    A(f"s_mov_b32 s65, {fbits(k0)}")
    A(f"s_mov_b32 s66, {fbits(k0 * 0.044715)}")
    A("s_lshl_b32 s3, s4, 2")
    A("s_add_u32 s3, s3, s7")
    A("s_mul_i32 s3, s3, 86")
    A("s_mul_i32 s59, s5, 6")
    A("s_add_u32 s59, s59, s58")
    A("s_lshl_b32 s67, s59, 1")
    A("s_add_u32 s3, s3, s67")
    A("s_lshl_b32 s3, s3, 10")
    A("v_lshlrev_b32 v216, 4, v1")
    A("s_waitcnt lgkmcnt(0)")
    for i in range(3):
        A(f"s_add_u32 s67, s59, {2*i}")
        A("s_cmp_ge_u32 s67, 43")
        A(f"s_cbranch_scc1 {L}_done")
        acc = 16 + 16 * i
        for q in range(4):
            bb = 184 + (i * 4 + q) * 2
            cs = 64 + (i * 4 + q) * 4
            t = 132 + q * 4
            A(f"v_lshlrev_b32 v{t}, 16, v{bb}")
            A(f"v_and_b32 v{t+1}, 0xffff0000, v{bb}")
            A(f"v_lshlrev_b32 v{t+2}, 16, v{bb+1}")
            A(f"v_and_b32 v{t+3}, 0xffff0000, v{bb+1}")
            for e in range(4):
                A(f"v_fma_f32 v{t+e}, -v12, v{cs+e}, v{t+e}")
            for e in range(4):
                A(f"v_fma_f32 v{t+e}, v{acc+4*q+e}, v13, v{t+e}")
        for r in range(16):
            A(f"v_mul_f32 v{148+r}, v{132+r}, v{132+r}")
        A("v_mov_b32 v180, s65")
        for r in range(16):
            A(f"v_fma_f32 v{148+r}, v{148+r}, s66, v180")
        for r in range(16):
            A(f"v_mul_f32 v{148+r}, v{148+r}, v{132+r}")
        for r in range(16):
            A(f"v_exp_f32 v{148+r}, v{148+r}")
        for r in range(16):
            A(f"v_add_f32 v{148+r}, 1.0, v{148+r}")
        for r in range(16):
            A(f"v_rcp_f32 v{148+r}, v{148+r}")
        for r in range(16):
            A(f"v_mul_f32 v{148+r}, v{148+r}, v{132+r}")
        o = 164 + 8 * (i & 1)
        for r in range(8):
            A(f"v_cvt_pk_bf16_f32 v{o+r}, v{148+2*r}, v{149+2*r}")
        A(f"buffer_store_dwordx4 v[{o}:{o+3}], v216, s[24:27], s3 offen")
        A(f"buffer_store_dwordx4 v[{o+4}:{o+7}], v216, s[24:27], s3 offen offset:1024")
        A("s_add_u32 s3, s3, 4096")
    A.label(f"{L}_done")
    stamp(A, 5)
    A("s_waitcnt vmcnt(0)")
    stamp(A, 6)
    stamp_out(A, 7, 0, L)
    A("s_endpgm")


def k1(A):
    A.raw(".p2align 8")
    A.raw(".type k1_kernel,@function")
    A.label("k1_kernel")
    A("s_cmp_ge_u32 s2, 256")
    A("s_cbranch_scc1 k1_exit")
    stamp(A, 0)
    load_kernargs(A)
    A("v_and_b32 v1, 63, v0")
    A("v_lshrrev_b32 v2, 6, v0")
    A("v_readfirstlane_b32 s6, v2")
    A("s_and_b32 s3, s2, 7")
    A("s_lshr_b32 s59, s2, 3")
    A("s_lshr_b32 s4, s3, 1")
    A("s_lshl_b32 s4, s4, 2")
    A("s_lshr_b32 s5, s59, 3")
    A("s_add_u32 s4, s4, s5")
    A("s_and_b32 s5, s59, 7")
    A("s_and_b32 s68, s3, 1")
    A("s_and_b32 s7, s6, 3")
    A("s_lshr_b32 s58, s6, 2")
    A("s_waitcnt lgkmcnt(0)")
    A("s_cmp_eq_u32 s68, 0")
    A("s_cbranch_scc0 k1_mlp")
    k1_path(A, "qkv")
    A.label("k1_mlp")
    k1_path(A, "mlp")
    A.label("k1_exit")
    A("s_endpgm")


def kred_body(A, head_sreg):
    srd(A, 8, P_WS, P_WS + 1, KVP_SIZE, KVP_OFF)
    srd(A, 12, P_WS, P_WS + 1, KVF_SIZE, KVF_OFF)
    A("v_lshlrev_b32 v1, 4, v0")
    A(f"s_lshl_b32 s3, s{head_sreg}, 12")
    for p in range(16):
        A(f"s_add_u32 s4, s3, {p * 32 * 4096}")
        A(f"buffer_load_dwordx4 v[{8+4*p}:{11+4*p}], v1, s[8:11], s4 offen")
    for p in range(1, 16):
        A(f"s_waitcnt vmcnt({15-p})")
        for e in range(4):
            A(f"v_add_f32 v{8+e}, v{8+e}, v{8+4*p+e}")
    A("v_cvt_pk_bf16_f32 v4, v8, v9")
    A("v_cvt_pk_bf16_f32 v5, v10, v11")
    A("v_lshrrev_b32 v2, 6, v0")
    A("v_and_b32 v3, 63, v0")
    A("v_lshlrev_b32 v3, 4, v3")
    A("v_lshrrev_b32 v6, 1, v2")
    A("v_lshl_add_u32 v3, v6, 10, v3")
    A("v_and_b32 v6, 1, v2")
    A("v_lshl_add_u32 v3, v6, 3, v3")
    A(f"s_lshl_b32 s3, s{head_sreg}, 11")


def kred(A):
    A.raw(".p2align 8")
    A.raw(".type kred_kernel,@function")
    A.label("kred_kernel")
    A("s_cmp_ge_u32 s2, 32")
    A("s_cbranch_scc1 kred_exit")
    load_kernargs(A)
    A("s_waitcnt lgkmcnt(0)")
    kred_body(A, 2)
    A("buffer_store_dwordx2 v[4:5], v3, s[12:15], s3 offen")
    A.label("kred_exit")
    A("s_endpgm")


K2_D = 8
K2_RING = K2_D * 2048
K2_LDS = 4 * K2_RING


def k2(A):
    D = K2_D
    A.raw(".p2align 8")
    A.raw(".type k2_kernel,@function")
    A.label("k2_kernel")
    A("s_cmp_ge_u32 s2, 256")
    A("s_cbranch_scc1 k2_exit")
    stamp(A, 0)
    load_kernargs(A)
    A("v_and_b32 v1, 63, v0")
    A("v_lshrrev_b32 v2, 6, v0")
    A("v_readfirstlane_b32 s6, v2")
    A("s_and_b32 s3, s2, 7")
    A("s_lshr_b32 s59, s2, 3")
    A("s_lshl_b32 s4, s3, 2")
    A("s_lshr_b32 s5, s59, 3")
    A("s_add_u32 s4, s4, s5")
    A("s_and_b32 s5, s59, 7")
    A("s_waitcnt lgkmcnt(0)")
    srd(A, 8, P_W2, P_W2 + 1, 1376 * 1024)
    srd(A, 12, P_WO, P_WO + 1, 512 * 1024)
    srd(A, 16, P_WS, P_WS + 1, H_SIZE, H_OFF)
    srd(A, 20, P_WS, P_WS + 1, PHIQ_SIZE, PHIQ_OFF)
    srd(A, 24, P_WS, P_WS + 1, KVF_SIZE, KVF_OFF)
    srd(A, 28, P_WS, P_WS + 1, G_SIZE, G_OFF)
    srd(A, 60, P_B2, P_B2 + 1, 1024)
    srd(A, 64, P_OUT, P_OUT + 1, 2048 * 1024)
    A("v_and_b32 v7, 31, v1")
    A("v_lshrrev_b32 v15, 5, v1")
    A("s_lshl_b32 s3, s4, 6")
    A("v_add_u32 v2, s3, v7")
    A("v_lshlrev_b32 v2, 2, v2")
    A("buffer_load_dword v10, v2, s[28:31], 0 offen")
    A("buffer_load_dword v11, v2, s[28:31], 0 offen offset:128")
    A("s_lshr_b32 s3, s6, 1")
    A("s_lshl_b32 s3, s3, 6")
    A("s_lshl_b32 s59, s5, 7")
    A("s_add_u32 s3, s3, s59")
    A("v_lshlrev_b32 v2, 3, v15")
    A("v_add_u32 v2, s3, v2")
    for q in range(4):
        A(f"buffer_load_dwordx2 v[{240+2*q}:{241+2*q}], v2, s[60:63], 0 offen offset:{q*16}")
    A("v_bfe_u32 v2, v1, 2, 2")
    A("v_lshl_add_u32 v2, v15, 2, v2")
    A("v_lshlrev_b32 v2, 10, v2")
    A("v_bfe_u32 v3, v1, 4, 1")
    A("v_lshl_add_u32 v2, v3, 6, v2")
    A("v_and_b32 v3, 3, v1")
    A("v_lshl_add_u32 v2, v3, 4, v2")
    A("s_lshl_b32 s3, s5, 7")
    A("v_add_u32 v2, s3, v2")
    A("v_lshlrev_b32 v3, 4, v1")
    A("v_lshlrev_b32 v4, 9, v15")
    A("v_bfe_u32 v5, v1, 2, 2")
    A("v_lshl_add_u32 v4, v5, 6, v4")
    A("v_bfe_u32 v5, v1, 4, 1")
    A("v_lshl_add_u32 v4, v5, 5, v4")
    A("v_and_b32 v5, 3, v1")
    A("v_lshl_add_u32 v4, v5, 3, v4")
    A(f"s_mul_i32 s68, s6, {K2_RING}")
    A("v_add_u32 v4, s68, v4")
    A("s_lshl_b32 s3, s4, 1")
    A("s_mul_i32 s69, s3, 86")
    A("s_add_u32 s69, s69, s6")
    A("s_lshl_b32 s69, s69, 10")
    A(f"s_add_u32 s70, s69, {86*1024}")
    A("s_lshl_b32 s71, s6, 14")
    A("s_lshl_b32 s72, s3, 5")
    A("s_lshl_b32 s59, s6, 3")
    A("s_add_u32 s72, s72, s59")
    A("s_lshl_b32 s72, s72, 11")
    A(f"s_add_u32 s73, s72, {32*2048}")
    A("s_lshl_b32 s74, s6, 14")
    A("s_lshl_b32 s75, s6, 17")

    NH, NA = 22, 8
    NS = NH + NA
    ACC = 16
    BF = 80
    AF = [144, 152]
    PQ = 160
    KV = 192
    ND = 208

    vm = []

    def issue(i):
        sl = i % D
        if i < NH:
            A(f"s_add_u32 s76, s71, {i * 65536}")
            A(f"s_add_u32 m0, s68, {sl*2048}")
            A(f"buffer_load_dwordx4 v2, s[8:11], s76 offen lds")
            A(f"s_add_u32 s76, s76, 8192")
            A(f"s_add_u32 m0, s68, {sl*2048+1024}")
            A(f"buffer_load_dwordx4 v2, s[8:11], s76 offen lds")
            A(f"s_add_u32 s76, s69, {i * 4096}")
            A(f"s_add_u32 s77, s70, {i * 4096}")
            A(f"buffer_load_dwordx4 v[{BF+sl*8}:{BF+sl*8+3}], v3, s[16:19], s76 offen")
            A(f"buffer_load_dwordx4 v[{BF+sl*8+4}:{BF+sl*8+7}], v3, s[16:19], s77 offen")
            vm.extend([("s", i)] * 4)
        else:
            hh = i - NH
            A(f"s_add_u32 s76, s75, {hh * 16384}")
            A(f"s_add_u32 m0, s68, {sl*2048}")
            A(f"buffer_load_dwordx4 v2, s[12:15], s76 offen lds")
            A(f"s_add_u32 s76, s76, 8192")
            A(f"s_add_u32 m0, s68, {sl*2048+1024}")
            A(f"buffer_load_dwordx4 v2, s[12:15], s76 offen lds")
            vm.extend([("s", i)] * 2)

    def issue_attn(hh):
        pb = PQ + (hh & 1) * 16
        kb = KV + (hh & 1) * 8
        A(f"s_add_u32 s76, s72, {hh*2048}")
        A(f"s_add_u32 s77, s73, {hh*2048}")
        A(f"s_add_u32 s78, s74, {hh*2048}")
        A(f"buffer_load_dwordx4 v[{kb}:{kb+3}], v3, s[24:27], s78 offen")
        A(f"buffer_load_dwordx4 v[{kb+4}:{kb+7}], v3, s[24:27], s78 offen offset:1024")
        A(f"buffer_load_dwordx4 v[{pb}:{pb+3}], v3, s[20:23], s76 offen")
        A(f"buffer_load_dwordx4 v[{pb+4}:{pb+7}], v3, s[20:23], s76 offen offset:1024")
        A(f"buffer_load_dwordx4 v[{pb+8}:{pb+11}], v3, s[20:23], s77 offen")
        A(f"buffer_load_dwordx4 v[{pb+12}:{pb+15}], v3, s[20:23], s77 offen offset:1024")
        vm.extend([("a", hh)] * 6)

    def wait_for(tag):
        last = max(k for k, t in enumerate(vm) if t == tag)
        n = len(vm) - 1 - last
        A(f"s_waitcnt vmcnt({min(n, 63)})")

    def areads(i):
        sl = i % D
        af = AF[i & 1]
        for ft in range(2):
            for jj in range(2):
                r = af + ft * 4 + jj * 2
                A(f"ds_read_b64_tr_b16 v[{r}:{r+1}], v4 offset:{sl*2048 + jj*1024 + ft*256}")

    for i in range(D):
        issue(i)
    wait_for(("s", 0))
    stamp(A, 1)
    areads(0)
    for i in range(NS):
        A.comment(f"step {i}")
        if i in (8, 16, NH):
            A("s_waitcnt lgkmcnt(0)")
            stamp(A, {8: 2, 16: 3, NH: 4}[i])
        sl = i % D
        af = AF[i & 1]
        if i + 1 < NS:
            wait_for(("s", i + 1))
            areads(i + 1)
            A("s_waitcnt lgkmcnt(4)")
        else:
            A("s_waitcnt lgkmcnt(0)")
        if i < NH:
            b0 = BF + sl * 8
            for ft in range(2):
                for tk in range(2):
                    acc = ACC + (ft * 2 + tk) * 16
                    cin = "0" if i == 0 else f"v[{acc}:{acc+15}]"
                    A(f"v_mfma_f32_32x32x16_bf16 v[{acc}:{acc+15}], v[{af+ft*4}:{af+ft*4+3}], v[{b0+tk*4}:{b0+tk*4+3}], {cin}")
        else:
            hh = i - NH
            pb = PQ + (hh & 1) * 16
            kb = KV + (hh & 1) * 8
            wait_for(("a", hh))
            for tk in range(2):
                nd = ND + tk * 16
                A(f"v_mfma_f32_32x32x16_bf16 v[{nd}:{nd+15}], v[{kb}:{kb+3}], v[{pb+tk*8}:{pb+tk*8+3}], 0")
                A(f"v_mfma_f32_32x32x16_bf16 v[{nd}:{nd+15}], v[{kb+4}:{kb+7}], v[{pb+tk*8+4}:{pb+tk*8+7}], v[{nd}:{nd+15}]")
            for tk in range(2):
                nd = ND + tk * 16
                num, den = (nd, nd + 8) if hh % 2 == 0 else (nd + 8, nd)
                A(f"v_add_f32 v{den}, {fbits(1e-6)}, v{den}")
                A(f"v_rcp_f32 v{den}, v{den}")
                A(f"v_mul_f32 v{den}, v{den}, v{10+tk}")
                for e in range(8):
                    A(f"v_mul_f32 v{num+e}, v{num+e}, v{den}")
                ob = BF + tk * 4
                for e in range(4):
                    A(f"v_cvt_pk_bf16_f32 v{ob+e}, v{num+2*e}, v{num+2*e+1}")
            for ft in range(2):
                for tk in range(2):
                    acc = ACC + (ft * 2 + tk) * 16
                    A(f"v_mfma_f32_32x32x16_bf16 v[{acc}:{acc+15}], v[{af+ft*4}:{af+ft*4+3}], v[{BF+tk*4}:{BF+tk*4+3}], v[{acc}:{acc+15}]")
            if hh + 2 < NA:
                issue_attn(hh + 2)
        if i + D < NS:
            issue(i + D)
        if i == NH - 3:
            issue_attn(0)
        if i == NH - 2:
            issue_attn(1)
        if i == NH - 1:
            A("v_sub_f32 v12, 1.0, v10")
            A("v_sub_f32 v13, 1.0, v11")
            for ft in range(2):
                for tk in range(2):
                    acc = ACC + (ft * 2 + tk) * 16
                    for e in range(16):
                        A(f"v_mul_f32 v{acc+e}, v{acc+e}, v{12+tk}")
    stamp(A, 5)
    A("s_barrier")
    stamp(A, 6)
    for t in range(4):
        A(f"s_cmp_eq_u32 s6, {t}")
        A(f"s_cbranch_scc1 k2_sk{t}")
        A(f"s_sub_u32 s3, s6, {t+1}")
        A("s_and_b32 s3, s3, 3")
        A("s_lshl_b32 s3, s3, 12")
        A(f"s_add_u32 s3, s3, {t*12288}")
        A("v_add_u32 v5, s3, v3")
        for q in range(4):
            r = ACC + t * 16 + q * 4
            A(f"ds_write_b128 v5, v[{r}:{r+3}] offset:{q*1024}")
        A.label(f"k2_sk{t}")
    A("s_waitcnt lgkmcnt(0)")
    A("s_barrier")
    A("s_mul_i32 s3, s6, 12288")
    A("v_add_u32 v5, s3, v3")
    for k in range(12):
        A(f"ds_read_b128 v[{80+4*k}:{83+4*k}], v5 offset:{k*1024}")
    for t in range(4):
        A(f"s_cmp_lg_u32 s6, {t}")
        A(f"s_cbranch_scc1 k2_mv{t}")
        for e in range(16):
            A(f"v_mov_b32 v{144+e}, v{ACC+t*16+e}")
        A(f"v_mov_b32 v14, v{12+(t&1)}")
        A.label(f"k2_mv{t}")
    A("s_waitcnt lgkmcnt(0)")
    for k in range(3):
        for e in range(16):
            A(f"v_add_f32 v{144+e}, v{144+e}, v{80+16*k+e}")
    for q in range(4):
        bb = 240 + 2 * q
        A(f"v_lshlrev_b32 v80, 16, v{bb}")
        A(f"v_and_b32 v81, 0xffff0000, v{bb}")
        A(f"v_lshlrev_b32 v82, 16, v{bb+1}")
        A(f"v_and_b32 v83, 0xffff0000, v{bb+1}")
        for e in range(4):
            A(f"v_fma_f32 v{144+4*q+e}, v{80+e}, v14, v{144+4*q+e}")
    for r in range(8):
        A(f"v_cvt_pk_bf16_f32 v{160+r}, v{144+2*r}, v{145+2*r}")
    A("v_permlane32_swap_b32 v160, v162")
    A("v_permlane32_swap_b32 v161, v163")
    A("v_permlane32_swap_b32 v164, v166")
    A("v_permlane32_swap_b32 v165, v167")
    A("s_lshl_b32 s3, s4, 6")
    A("s_and_b32 s59, s6, 1")
    A("s_lshl_b32 s59, s59, 5")
    A("s_add_u32 s3, s3, s59")
    A("v_add_u32 v5, s3, v7")
    A("v_lshlrev_b32 v5, 10, v5")
    A("v_lshl_add_u32 v5, v15, 4, v5")
    A("s_lshl_b32 s3, s5, 7")
    A("s_lshr_b32 s59, s6, 1")
    A("s_lshl_b32 s59, s59, 6")
    A("s_add_u32 s3, s3, s59")
    A("buffer_store_dwordx4 v[160:163], v5, s[64:67], s3 offen")
    A("buffer_store_dwordx4 v[164:167], v5, s[64:67], s3 offen offset:32")
    stamp(A, 7)
    stamp_out(A, 8, 1, "k2")
    A.label("k2_exit")
    A("s_endpgm")


HEADER = open("cdna_kernels/" + NAME + ".s.ref").read().split("; Override")[0]


def kd(name, vgpr, sgpr=102):
    return f""".amdhsa_kernel {name}
  .amdhsa_next_free_vgpr {vgpr}
  .amdhsa_next_free_sgpr {sgpr}
  .amdhsa_accum_offset {vgpr}
  .amdhsa_group_segment_fixed_size 0
  .amdhsa_kernarg_size 104
  .amdhsa_user_sgpr_count 2
  .amdhsa_user_sgpr_kernarg_segment_ptr 1
  .amdhsa_system_sgpr_workgroup_id_x 1
.end_amdhsa_kernel
"""


def main():
    out = HEADER
    out += f"; @launch kernel=k1_kernel grid=(256,1,1) block=(512,1,1) lds={K1_LDS}\n"
    out += f"; @launch kernel=kred_kernel grid=(32,1,1) block=(256,1,1) lds=0\n"
    out += f"; @launch kernel=k2_kernel grid=(256,1,1) block=(256,1,1) lds={K2_LDS}\n"
    out += '.amdgcn_target "amdgcn-amd-amdhsa--gfx950"\n.text\n'
    for name, fn in (("k1_kernel", k1), ("kred_kernel", kred), ("k2_kernel", k2)):
        A = Asm()
        out += f".globl {name}\n"
        fn(A)
        out += A.finish()
    out += '.section .rodata,"a"\n'
    for name, vg in (("k1_kernel", 256), ("kred_kernel", 80), ("k2_kernel", 256)):
        out += ".p2align 6\n" + kd(name, vg)
    path = sys.argv[1] if len(sys.argv) > 1 else "cdna_kernels/" + NAME + ".s"
    open(path, "w").write(out)
    print("wrote", path, len(out))


if __name__ == "__main__":
    main()
```

```python
import sys
from asmlib import Asm, vr, sr

NAME = "gated_mix__linear_kernel_hedgehog__mixer_channel_mlp__prompt"

H_OFF, H_SIZE = 0, 64 * 86 * 1024
PHIQ_OFF, PHIQ_SIZE = 0x600000, 0x400000
KVP_OFF, KVP_SIZE = 0xA00000, 0x200000
KVF_OFF, KVF_SIZE = 0xC00000, 0x10000
G_OFF, G_SIZE = 0xC10000, 0x2000
FL_OFF, FL_SIZE = 0xC20000, 0x1000
FL_HF, FL_KF, FL_RF = 0, 0x800, 0xC00
SPIN_MAX = 1 << 16

L2E = 0x3FB8AA3B
ONES = 0x3F803F80


def fbits(x):
    import struct
    return struct.unpack("<I", struct.pack("<f", x))[0]


def srd(A, d, lo, hi, size, off=0):
    if off:
        A(f"s_add_u32 s{d}, s{lo}, {off}")
        A(f"s_addc_u32 s{d+1}, s{hi}, 0")
    else:
        A(f"s_mov_b32 s{d}, s{lo}")
        A(f"s_mov_b32 s{d+1}, s{hi}")
    A(f"s_mov_b32 s{d+2}, {size}")
    A(f"s_mov_b32 s{d+3}, 0x00020000")


def load_kernargs(A):
    A("s_load_dwordx16 s[32:47], s[0:1], 0")
    A("s_load_dwordx8 s[48:55], s[0:1], 64")
    A("s_load_dwordx2 s[56:57], s[0:1], 96")


P_AX, P_WQKV, P_WPHI, P_WO, P_BX, P_W1, P_B1, P_W2 = 32, 34, 36, 38, 40, 42, 44, 46
P_B2, P_GW, P_OUT, P_DBG, P_WS = 48, 50, 52, 54, 56

K1_WB = [0, 24576, 49152]
K1_XB = [73728, 90112, 106496]
K1_GATE = 122880
K1_LDS = 163840
K2_RB = 98304


def k1_path(A, typ):
    qkv = typ == "qkv"
    stride = 3072 if qkv else 2752
    sec = 1024 if qkv else 128
    L = "k1q" if qkv else "k1m"
    if qkv:
        srd(A, 8, P_AX, P_AX + 1, 2048 * 1024)
        srd(A, 12, P_WQKV, P_WQKV + 1, 512 * 3072)
        srd(A, 16, P_WPHI, P_WPHI + 1, 32 * 512)
        srd(A, 24, P_WS, P_WS + 1, PHIQ_SIZE, PHIQ_OFF)
        srd(A, 28, P_WS, P_WS + 1, KVP_SIZE, KVP_OFF)
    else:
        srd(A, 8, P_AX, P_AX + 1, 2048 * 1024)
        srd(A, 12, P_W1, P_W1 + 1, 512 * 2752)
        srd(A, 16, P_B1, P_B1 + 1, 2752)
        srd(A, 24, P_WS, P_WS + 1, H_SIZE, H_OFF)
    A("v_and_b32 v7, 31, v1")
    A("v_lshrrev_b32 v15, 5, v1")
    if qkv:
        A("s_lshl_b32 s3, s5, 2")
        A("s_lshl_b32 s59, s58, 1")
        A("s_add_u32 s3, s3, s59")
        A("v_lshrrev_b32 v132, 4, v7")
        A("v_add_u32 v132, s3, v132")
        A("v_lshlrev_b32 v132, 9, v132")
        A("v_and_b32 v133, 15, v7")
        A("v_lshl_add_u32 v132, v133, 1, v132")
        A("v_lshl_add_u32 v132, v15, 7, v132")
        for j in range(8):
            d = (j & 3) + 8 * (j >> 2)
            A(f"buffer_load_ushort v{140 + j}, v132, s[16:19], 0 offen offset:{d * 32}")
    else:
        srd(A, 20, P_GW, P_GW + 1, 1024)
        A("v_lshlrev_b32 v133, 4, v1")
        A("s_cmp_lg_u32 s6, 0")
        A(f"s_cbranch_scc1 {L}_nogate")
        A(f"s_mov_b32 m0, {K1_GATE}")
        A("buffer_load_dwordx4 v133, s[20:23], 0 offen lds")
        A.label(f"{L}_nogate")
        A("s_cmp_lg_u32 s6, 1")
        A(f"s_cbranch_scc1 {L}_noones")
        for k in range(4):
            A(f"v_mov_b32 v{136 + k}, {ONES}")
        A(f"v_add_u32 v134, {K1_GATE + 1024}, v133")
        A("ds_write_b128 v134, v[136:139]")
        A("s_waitcnt lgkmcnt(0)")
        A.label(f"{L}_noones")
        A("s_nop 1")
        A("s_mul_i32 s3, s5, 6")
        A("s_add_u32 s3, s3, s58")
        A("s_lshl_b32 s3, s3, 6")
        A("v_lshlrev_b32 v132, 3, v15")
        A("v_add_u32 v132, s3, v132")
        for i in range(3):
            for q in range(4):
                r = 184 + (i * 4 + q) * 2
                A(f"buffer_load_dwordx2 v[{r}:{r+1}], v132, s[16:19], 0 offen offset:{i * 128 + q * 16}")
    A("v_lshrrev_b32 v132, 3, v1")
    A("s_lshl_b32 s3, s4, 7")
    A("s_lshl_b32 s59, s6, 4")
    A("s_add_u32 s3, s3, s59")
    A("v_add_u32 v132, s3, v132")
    A("v_lshlrev_b32 v132, 10, v132")
    A("v_and_b32 v133, 7, v1")
    A("v_lshrrev_b32 v134, 4, v1")
    A("v_xor_b32 v135, v133, v134")
    A("v_lshl_add_u32 v2, v135, 4, v132")
    A("v_xor_b32 v135, 4, v135")
    A("v_lshl_add_u32 v3, v135, 4, v132")
    A("v_add_u32 v3, 8192, v3")
    A("v_bfe_u32 v132, v1, 2, 2")
    A("s_lshl_b32 s3, s6, 3")
    A("v_add_u32 v132, s3, v132")
    A(f"s_mov_b32 s59, {stride}")
    A("v_mul_lo_u32 v132, v132, s59")
    A("v_and_b32 v133, 3, v1")
    A("v_lshl_add_u32 v132, v133, 4, v132")
    A(f"s_mul_i32 s3, s5, {128 if qkv else 384}")
    A("v_add_u32 v132, s3, v132")
    A("v_lshrrev_b32 v134, 4, v1")

    def colbytes(dst, ttreg):
        A(f"v_lshrrev_b32 v136, 1, v{ttreg}")
        A(f"v_mul_u32_u24 v136, {sec}, v136")
        A(f"v_and_b32 v137, 1, v{ttreg}")
        A(f"v_lshl_add_u32 v136, v137, 6, v136")
        A(f"v_add_u32 v{dst}, v132, v136")
    colbytes(4, 134)
    A("v_add_u32 v135, 4, v134")
    A("v_subrev_u32 v138, 2, v134")
    A("v_cmp_gt_u32 vcc, 32, v1")
    A("v_cndmask_b32 v135, v138, v135, vcc")
    colbytes(5, 135)
    A(f"v_mov_b32 v138, {4 * stride}")
    A("v_cndmask_b32 v138, v138, 0, vcc")
    A("v_add_u32 v5, v5, v138")
    A("v_add_u32 v135, 2, v134")
    colbytes(6, 135)
    A(f"v_add_u32 v6, {4 * stride}, v6")
    A("s_lshl_b32 s60, s6, 11")
    A(f"s_add_u32 s60, s60, {K1_XB[0]}")
    A("s_mul_i32 s61, s6, 3072")

    def dma(c):
        b = c % 3
        A(f"s_mov_b32 s62, {c * 128}")
        A(f"s_mov_b32 s63, {c * 64 * stride}")
        for i in range(2):
            A(f"s_add_u32 m0, s60, {b * 16384 + i * 1024}")
            A(f"buffer_load_dwordx4 v{2 + i}, s[8:11], s62 offen lds")
        for i in range(3):
            A(f"s_add_u32 m0, s61, {b * 24576 + i * 1024}")
            A(f"buffer_load_dwordx4 v{4 + i}, s[12:15], s63 offen lds")
    dma(0)
    dma(1)
    A("s_lshl_b32 s3, s7, 5")
    A("v_add_u32 v132, s3, v7")
    A("v_lshlrev_b32 v132, 7, v132")
    A(f"v_add_u32 v132, {K1_XB[0]}, v132")
    A("v_bfe_u32 v133, v7, 1, 3")
    A("v_xor_b32 v133, v133, v15")
    for s in range(4):
        A(f"v_xor_b32 v134, {2 * s}, v133")
        A(f"v_lshl_add_u32 v{8 + s}, v134, 4, v132")
    A("v_mul_u32_u24 v12, 3072, v15")
    A("v_bfe_u32 v132, v1, 2, 2")
    A("v_lshl_add_u32 v12, v132, 6, v12")
    A("v_bfe_u32 v132, v1, 4, 1")
    A("v_lshl_add_u32 v12, v132, 5, v12")
    A("v_and_b32 v132, 3, v1")
    A("v_lshl_add_u32 v12, v132, 3, v12")
    A("s_lshl_b32 s3, s58, 8")
    A("v_add_u32 v12, s3, v12")
    A("v_add_u32 v13, 49152, v12")
    if qkv:
        A("v_lshlrev_b32 v132, 2, v15")
        A("v_sub_u32 v132, v7, v132")
        for sg in range(2):
            for p in range(4):
                f0 = ((2 * p) & 3) + 8 * ((2 * p) >> 2) + 16 * sg
                dst = 124 + sg * 4 + p
                A(f"v_cmp_eq_u32 vcc, {f0}, v132")
                A(f"v_mov_b32 v133, 0x3f80")
                A(f"v_cndmask_b32 v{dst}, 0, v133, vcc")
                A(f"v_cmp_eq_u32 vcc, {f0 + 1}, v132")
                A(f"v_mov_b32 v133, 0x3f800000")
                A(f"v_cndmask_b32 v133, 0, v133, vcc")
                A(f"v_or_b32 v{dst}, v{dst}, v133")
    else:
        A("v_and_b32 v132, 15, v1")
        A("s_lshl_b32 s3, s6, 4")
        A("v_add_u32 v132, s3, v132")
        A("v_bfe_u32 v133, v132, 1, 3")
        A("v_lshrrev_b32 v134, 4, v1")
        A("v_xor_b32 v133, v133, v134")
        A("v_lshlrev_b32 v132, 7, v132")
        A("v_lshl_add_u32 v14, v133, 4, v132")
        A(f"v_add_u32 v14, {K1_XB[0]}, v14")
        A("v_xor_b32 v109, 64, v14")
        A("v_and_b32 v132, 15, v1")
        A("v_cmp_eq_u32 vcc, 1, v132")
        A(f"v_mov_b32 v133, {K1_GATE + 1024}")
        A(f"v_mov_b32 v135, {K1_GATE}")
        A("v_cndmask_b32 v133, v133, v135, vcc")
        A("v_lshl_add_u32 v110, v134, 4, v133")
        A("v_and_b32 v132, 31, v1")
        A("v_cmp_eq_u32 vcc, 0, v132")
        A(f"v_mov_b32 v133, {ONES}")
        A("v_cndmask_b32 v220, 0, v133, vcc")
        A("v_cmp_eq_u32 vcc, 17, v132")
        A("v_cndmask_b32 v220, v220, v133, vcc")
        for k in range(1, 4):
            A(f"v_mov_b32 v{220 + k}, v220")
        for r in list(range(120, 128)) + list(range(208, 220)):
            A(f"v_mov_b32 v{r}, 0")
    A(f"s_mov_b32 s64, {ONES}")
    XF = [64, 80]
    WF = [68, 84]
    lg = []

    def lds(tag, text):
        A(text)
        lg.append(tag)

    def wait_lg(tag):
        last = max(k for k, t in enumerate(lg) if t == tag)
        A(f"s_waitcnt lgkmcnt({len(lg) - 1 - last})")

    def reads(st, c, s):
        b = c % 3
        lds(("f", c, s), f"ds_read_b128 v[{XF[st]}:{XF[st]+3}], v{8 + s} offset:{b * 16384}")
        base, imm0 = (12, b * 24576) if b < 2 else (13, 0)
        for i in range(3):
            for jj in range(2):
                r = WF[st] + i * 4 + jj * 2
                lds(("f", c, s), f"ds_read_b64_tr_b16 v[{r}:{r+1}], v{base} offset:{imm0 + s * 6144 + jj * 1536 + i * 512}")

    def dma_piece(c, k):
        b = c % 3
        if k < 2:
            A(f"s_add_u32 m0, s60, {b * 16384 + k * 1024}")
            A(f"buffer_load_dwordx4 v{2 + k}, s[8:11], s62 offen lds")
        else:
            i = k - 2
            A(f"s_add_u32 m0, s61, {b * 24576 + i * 1024}")
            A(f"buffer_load_dwordx4 v{4 + i}, s[12:15], s63 offen lds")

    for c in range(8):
        A.comment(f"chunk {c}")
        A(f"s_waitcnt vmcnt({5 if c < 7 else 0})")
        A("s_barrier")
        if c == 0:
            stamp(A, 1)
            if qkv:
                A("s_cmp_lg_u32 s2, 0")
                A("s_cbranch_scc1 k1_noinit2")
                A("s_cmp_lg_u32 s6, 7")
                A("s_cbranch_scc1 k1_noinit2")
                srd(A, 72, P_DBG, P_DBG + 1, 256)
                A("v_mov_b32 v132, 1")
                A("v_mov_b32 v133, 0")
                A("buffer_store_dword v132, v133, s[72:75], 0 offen sc1")
                A.label("k1_noinit2")
                A.fence()
        reads(0, c, 0)
        if not qkv:
            b = c % 3
            lds(("x", c, 0), f"ds_read_b128 v[96:99], v14 offset:{b * 16384}")
            lds(("x", c, 0), f"ds_read_b128 v[112:115], v110 offset:{c * 128}")
            lds(("x", c, 1), f"ds_read_b128 v[100:103], v109 offset:{b * 16384}")
            lds(("x", c, 1), f"ds_read_b128 v[116:119], v110 offset:{c * 128 + 64}")
        if c + 2 < 8:
            A(f"s_mov_b32 s62, {(c + 2) * 128}")
            A(f"s_mov_b32 s63, {(c + 2) * 64 * stride}")
        for s in range(4):
            st = s & 1
            if s < 3:
                reads(st ^ 1, c, s + 1)
            wait_lg(("f", c, s))
            x = f"v[{XF[st]}:{XF[st]+3}]"
            first = (c == 0 and s == 0)
            for i in range(3):
                acc = f"v[{16 + 16 * i}:{31 + 16 * i}]"
                w = f"v[{WF[st] + 4 * i}:{WF[st] + 4 * i + 3}]"
                cin = "0" if first else acc
                if qkv and i == 2:
                    A(f"v_mfma_f32_32x32x16_bf16 {acc}, {x}, {w}, {cin}")
                else:
                    A(f"v_mfma_f32_32x32x16_bf16 {acc}, {w}, {x}, {cin}")
                if i == 0 and c + 2 < 8:
                    dma_piece(c + 2, s)
            if not qkv:
                if s in (1, 2):
                    kh = s - 1
                    xs, ax = 96 + 4 * kh, 112 + 4 * kh
                    A(f"v_mfma_f32_16x16x32_bf16 v[120:123], v[{xs}:{xs+3}], v[{xs}:{xs+3}], v[120:123]")
                    A(f"v_mfma_f32_16x16x32_bf16 v[124:127], v[{ax}:{ax+3}], v[{xs}:{xs+3}], v[124:127]")
                A(f"s_cmp_lg_u32 s7, {s}")
                A(f"s_cbranch_scc1 {L}_cs{c}_{s}")
                for i in range(3):
                    cs = 208 + 4 * i
                    A(f"v_mfma_f32_16x16x32_bf16 v[{cs}:{cs+3}], v[220:223], v[{WF[st]+4*i}:{WF[st]+4*i+3}], v[{cs}:{cs+3}]")
                A.label(f"{L}_cs{c}_{s}")
            if s == 3 and c + 2 < 8:
                dma_piece(c + 2, 4)
    A("s_barrier")
    stamp(A, 2)
    k2_early(A, L)
    A.fence()
    if qkv:
        k1_epi_qkv(A, L)
    else:
        k1_epi_mlp(A, L)


def softmax_head(A, p, outp, outm, t):
    M, N, C, D = t, t + 1, t + 2, t + 3
    ep, em = t + 4, t + 12
    A(f"v_max3_f32 v{M}, v{p}, v{p+1}, v{p+2}")
    A(f"v_max3_f32 v{N}, -v{p}, -v{p+1}, -v{p+2}")
    A(f"v_max3_f32 v{M}, v{M}, v{p+3}, v{p+4}")
    A(f"v_max3_f32 v{N}, v{N}, -v{p+3}, -v{p+4}")
    A(f"v_max3_f32 v{M}, v{M}, v{p+5}, v{p+6}")
    A(f"v_max3_f32 v{N}, v{N}, -v{p+5}, -v{p+6}")
    A(f"v_max_f32 v{M}, v{M}, v{p+7}")
    A(f"v_max_f32_e64 v{N}, v{N}, -v{p+7}")
    A(f"v_permlane32_swap_b32 v{M}, v{N}")
    A(f"v_max_f32 v{C}, v{M}, v{N}")
    A(f"v_mul_f32 v{C}, s65, v{C}")
    A(f"v_mov_b32 v{D}, v{C}")
    A(f"v_permlane32_swap_b32 v{C}, v{D}")
    for i in range(8):
        A(f"v_fma_f32 v{ep+i}, v{p+i}, s65, -v{C}")
        A(f"v_fma_f32 v{em+i}, -v{p+i}, s65, -v{D}")
    for i in range(8):
        A(f"v_exp_f32 v{ep+i}, v{ep+i}")
        A(f"v_exp_f32 v{em+i}, v{em+i}")
    A(f"v_add_f32 v{M}, v{ep}, v{ep+1}")
    A(f"v_add_f32 v{N}, v{em}, v{em+1}")
    for i in range(2, 8):
        A(f"v_add_f32 v{M}, v{M}, v{ep+i}")
        A(f"v_add_f32 v{N}, v{N}, v{em+i}")
    A(f"v_permlane32_swap_b32 v{M}, v{N}")
    A(f"v_add_f32 v{C}, v{M}, v{N}")
    A(f"v_rcp_f32 v{C}, v{C}")
    A(f"v_mov_b32 v{D}, v{C}")
    A(f"v_permlane32_swap_b32 v{C}, v{D}")
    for i in range(8):
        A(f"v_mul_f32 v{ep+i}, v{ep+i}, v{C}")
        A(f"v_mul_f32 v{em+i}, v{em+i}, v{D}")
    for i in range(4):
        A(f"v_cvt_pk_bf16_f32 v{outp+i}, v{ep+2*i}, v{ep+2*i+1}")
        A(f"v_cvt_pk_bf16_f32 v{outm+i}, v{em+2*i}, v{em+2*i+1}")


def feature_map(A, acc, out):
    for i in range(8):
        A(f"v_cvt_pk_bf16_f32 v{132+i}, v{acc+2*i}, v{acc+2*i+1}")
    A("v_mfma_f32_32x32x16_bf16 v[140:155], v[116:119], v[132:135], 0")
    A("v_mfma_f32_32x32x16_bf16 v[140:155], v[120:123], v[136:139], v[140:155]")
    softmax_head(A, 140, out, out + 4, 176)
    softmax_head(A, 148, out + 8, out + 12, 196)


def k1_epi_qkv(A, L):
    A(f"s_mov_b32 s65, {L2E}")
    for i in range(4):
        A(f"v_lshl_or_b32 v{112+i}, v{141+2*i}, 16, v{140+2*i}")
    A("v_cmp_gt_u32 vcc, 16, v7")
    for i in range(4):
        A(f"v_cndmask_b32 v{116+i}, 0, v{112+i}, vcc")
        A(f"v_cndmask_b32 v{120+i}, v{112+i}, 0, vcc")
    A.fence()
    feature_map(A, 16, 160)
    A("s_lshl_b32 s3, s4, 2")
    A("s_add_u32 s3, s3, s7")
    A("s_lshl_b32 s3, s3, 5")
    A("s_lshl_b32 s59, s5, 2")
    A("s_add_u32 s3, s3, s59")
    A("s_lshl_b32 s59, s58, 1")
    A("s_add_u32 s3, s3, s59")
    A("s_lshl_b32 s3, s3, 11")
    A("v_lshlrev_b32 v216, 4, v1")
    for i in range(4):
        A(f"buffer_store_dwordx4 v[{160+4*i}:{163+4*i}], v216, s[24:27], s3 offen offset:{i*1024} sc1")
    feature_map(A, 32, 220)
    A("v_mfma_f32_32x32x16_bf16 v[16:31], v[220:223], v[124:127], 0")
    A("v_mfma_f32_32x32x16_bf16 v[32:47], v[228:231], v[124:127], 0")
    A("v_mfma_f32_32x32x16_bf16 v[16:31], v[224:227], v[128:131], v[16:31]")
    A("v_mfma_f32_32x32x16_bf16 v[32:47], v[232:235], v[128:131], v[32:47]")
    for i in range(8):
        A(f"v_cvt_pk_bf16_f32 v{132+i}, v{48+2*i}, v{49+2*i}")
    A("v_cmp_gt_u32 vcc, 16, v7")
    A("v_mov_b32 v156, s64")
    for i in range(8):
        A(f"v_cndmask_b32 v{140+i}, v156, v{132+i}, vcc")
        A(f"v_cndmask_b32 v{148+i}, v{132+i}, v156, vcc")
    for i in range(8):
        A(f"v_cvt_pk_bf16_f32 v{176+i}, v{16+2*i}, v{17+2*i}")
    for i in range(8):
        A(f"v_cvt_pk_bf16_f32 v{184+i}, v{32+2*i}, v{33+2*i}")
    A("v_mfma_f32_32x32x16_bf16 v[48:63], v[176:179], v[140:143], 0")
    A("v_mfma_f32_32x32x16_bf16 v[64:79], v[184:187], v[148:151], 0")
    A("v_mfma_f32_32x32x16_bf16 v[48:63], v[180:183], v[144:147], v[48:63]")
    A("v_mfma_f32_32x32x16_bf16 v[64:79], v[188:191], v[152:155], v[64:79]")
    A("s_barrier")
    A("s_lshl_b32 s3, s6, 13")
    A("v_lshlrev_b32 v216, 4, v1")
    A("v_add_u32 v217, s3, v216")
    for hh in range(2):
        for q in range(4):
            r = 48 + hh * 16 + q * 4
            A(f"ds_write_b128 v217, v[{r}:{r+3}] offset:{(hh*4+q)*1024}")
    A("s_waitcnt lgkmcnt(0)")
    A("s_barrier")
    A("s_lshl_b32 s3, s58, 15")
    A("s_lshl_b32 s59, s7, 11")
    A("s_add_u32 s3, s3, s59")
    A("v_add_u32 v217, s3, v216")
    for u in range(2):
        for t in range(4):
            r = 132 + (u * 4 + t) * 4
            A(f"ds_read_b128 v[{r}:{r+3}], v217 offset:{t*8192 + u*1024}")
    A("s_waitcnt lgkmcnt(0)")
    for u in range(2):
        b = 132 + u * 16
        for e in range(4):
            A(f"v_add_f32 v{b+e}, v{b+e}, v{b+4+e}")
            A(f"v_add_f32 v{b+8+e}, v{b+8+e}, v{b+12+e}")
        for e in range(4):
            A(f"v_add_f32 v{b+e}, v{b+e}, v{b+8+e}")
    A("s_lshl_b32 s3, s4, 5")
    A("s_lshl_b32 s59, s5, 2")
    A("s_add_u32 s3, s3, s59")
    A("s_lshl_b32 s59, s58, 1")
    A("s_add_u32 s3, s3, s59")
    A("s_lshl_b32 s3, s3, 12")
    A("s_lshl_b32 s59, s7, 11")
    A("s_add_u32 s3, s3, s59")
    for u in range(2):
        b = 132 + u * 16
        A(f"buffer_store_dwordx4 v[{b}:{b+3}], v216, s[28:31], s3 offen offset:{u*1024} sc1")
    publish(A, L, L == "k1q")


import os
STAMP = bool(os.environ.get("STAMP"))


def stamp(A, k):
    if not STAMP:
        return
    A(f"s_memtime s[{80+2*k}:{81+2*k}]")
    A("s_waitcnt lgkmcnt(0)")


def stamp_out(A, n, region, tag):
    if not STAMP:
        return
    A("s_cmp_lg_u32 s6, 0")
    A(f"s_cbranch_scc1 st_{tag}")
    srd(A, 96, P_WS, P_WS + 1, 65536, 0xE00000 + region * 65536)
    A("s_lshl_b32 s95, s2, 6")
    for k in range(n):
        A(f"v_mov_b32 v255, s{80+2*k}")
        A(f"v_mov_b32 v254, 0")
        A(f"buffer_store_dword v255, v254, s[96:99], s95 offen offset:{4*k}")
    A.label(f"st_{tag}")


def dbg_dump(A, regs, wg, wave, tag):
    import os
    if not os.environ.get("DBG"):
        return
    A(f"s_cmp_lg_u32 s2, {wg}")
    A(f"s_cbranch_scc1 dbg_{tag}")
    A(f"s_cmp_lg_u32 s6, {wave}")
    A(f"s_cbranch_scc1 dbg_{tag}")
    srd(A, 96, P_WS, P_WS + 1, 65536, 0xD00000)
    A("v_lshlrev_b32 v255, 2, v1")
    for i, r in enumerate(regs):
        A(f"s_movk_i32 s95, {i*256}")
        A(f"buffer_store_dword v{r}, v255, s[96:99], s95 offen")
    A("s_waitcnt vmcnt(0)")
    A.label(f"dbg_{tag}")
    A.fence()


def k1_epi_mlp(A, L):
    A("v_and_b32 v132, 15, v1")
    A("v_and_b32 v133, 3, v1")
    A("v_mov_b32 v134, v120")
    for r in range(1, 4):
        A(f"v_cmp_eq_u32 vcc, {r}, v133")
        A(f"v_cndmask_b32 v134, v134, v{120 + r}, vcc")
    A("s_lshl_b32 s3, s6, 4")
    A("v_add_u32 v135, s3, v132")
    A("v_lshlrev_b32 v135, 3, v135")
    A("v_lshlrev_b32 v136, 2, v1")
    A("v_add_u32 v136, 1024, v136")
    A("v_lshrrev_b32 v137, 4, v1")
    A("v_bfe_u32 v138, v1, 2, 2")
    A("v_cmp_eq_u32 vcc, v137, v138")
    A("v_cndmask_b32 v139, v136, v135, vcc")
    A("ds_write_b32 v139, v134 offset:4")
    A("v_cmp_gt_u32 vcc, 16, v1")
    A("v_cndmask_b32 v139, v136, v135, vcc")
    A("ds_write_b32 v139, v124")
    A("s_mul_i32 s3, s6, 384")
    A("s_add_u32 s3, s3, 2048")
    A("v_lshl_add_u32 v139, v132, 2, s3")
    A("v_cndmask_b32 v139, v136, v139, vcc")
    for i in range(3):
        A(f"ds_write_b32 v139, v{208 + 4 * i} offset:{i * 128}")
        A(f"ds_write_b32 v139, v{209 + 4 * i} offset:{i * 128 + 64}")
    A(f"s_mov_b32 s65, {L2E}")
    A("v_mul_f32 v125, s65, v125")
    A("v_exp_f32 v125, -v125")
    A("v_add_f32 v125, 1.0, v125")
    A("v_rcp_f32 v125, v125")
    A("s_cmp_lg_u32 s5, 0")
    A(f"s_cbranch_scc1 {L}_nog")
    srd(A, 20, P_WS, P_WS + 1, G_SIZE, G_OFF)
    A("s_lshl_b32 s3, s4, 7")
    A("s_lshl_b32 s59, s6, 4")
    A("s_add_u32 s3, s3, s59")
    A("v_add_u32 v139, s3, v132")
    A("v_lshlrev_b32 v139, 2, v139")
    A("v_mov_b32 v140, 0x100000")
    A("v_cndmask_b32 v139, v140, v139, vcc")
    A("buffer_store_dword v125, v139, s[20:23], 0 offen sc1")
    A.label(f"{L}_nog")
    A("s_waitcnt lgkmcnt(0)")
    A("s_barrier")
    A("s_lshl_b32 s3, s7, 5")
    A("v_add_u32 v134, s3, v7")
    A("v_lshlrev_b32 v134, 3, v134")
    A("ds_read_b64 v[104:105], v134")
    A("v_min_u32 v135, 47, v1")
    A("v_lshlrev_b32 v135, 3, v135")
    A("s_mul_i32 s3, s58, 1536")
    A("v_add_u32 v136, s3, v135")
    for t in range(4):
        A(f"ds_read_b64 v[{140 + 2 * t}:{141 + 2 * t}], v136 offset:{2048 + t * 384}")
    A("s_waitcnt lgkmcnt(0)")
    A("v_add_f32 v140, v140, v142")
    A("v_add_f32 v141, v141, v143")
    A("v_add_f32 v144, v144, v146")
    A("v_add_f32 v145, v145, v147")
    A("v_add_f32 v140, v140, v144")
    A("v_add_f32 v141, v141, v145")
    A("s_lshl_b32 s3, s6, 9")
    A("s_add_u32 s3, s3, 8192")
    A("v_add_u32 v136, s3, v135")
    A("ds_write_b64 v136, v[140:141]")
    A(f"v_mul_f32 v104, {fbits(1/512.0)}, v104")
    A(f"v_mul_f32 v105, {fbits(1/512.0)}, v105")
    A("v_fma_f32 v105, -v104, v104, v105")
    A("v_max_f32 v105, 0, v105")
    A(f"v_add_f32 v105, {fbits(1e-5)}, v105")
    A("v_rsq_f32 v13, v105")
    A("v_mul_f32 v12, v104, v13")
    A("v_lshlrev_b32 v134, 4, v15")
    A("v_add_u32 v134, s3, v134")
    A("s_waitcnt lgkmcnt(0)")
    for i in range(3):
        for q in range(4):
            r = 64 + (i * 4 + q) * 4
            A(f"ds_read_b128 v[{r}:{r+3}], v134 offset:{i*128 + q*32}")
    k0 = -2.0 * 0.7978845608028654 * 1.4426950408889634
    A(f"s_mov_b32 s65, {fbits(k0)}")
    A(f"s_mov_b32 s66, {fbits(k0 * 0.044715)}")
    A("s_lshl_b32 s3, s4, 2")
    A("s_add_u32 s3, s3, s7")
    A("s_mul_i32 s3, s3, 86")
    A("s_mul_i32 s59, s5, 6")
    A("s_add_u32 s59, s59, s58")
    A("s_lshl_b32 s67, s59, 1")
    A("s_add_u32 s3, s3, s67")
    A("s_lshl_b32 s3, s3, 10")
    A("v_lshlrev_b32 v216, 4, v1")
    A("s_waitcnt lgkmcnt(0)")
    for i in range(3):
        A(f"s_add_u32 s67, s59, {2*i}")
        A("s_cmp_ge_u32 s67, 43")
        A(f"s_cbranch_scc1 {L}_done")
        acc = 16 + 16 * i
        for q in range(4):
            bb = 184 + (i * 4 + q) * 2
            cs = 64 + (i * 4 + q) * 4
            t = 132 + q * 4
            A(f"v_lshlrev_b32 v{t}, 16, v{bb}")
            A(f"v_and_b32 v{t+1}, 0xffff0000, v{bb}")
            A(f"v_lshlrev_b32 v{t+2}, 16, v{bb+1}")
            A(f"v_and_b32 v{t+3}, 0xffff0000, v{bb+1}")
            for e in range(4):
                A(f"v_fma_f32 v{t+e}, -v12, v{cs+e}, v{t+e}")
            for e in range(4):
                A(f"v_fma_f32 v{t+e}, v{acc+4*q+e}, v13, v{t+e}")
        for r in range(16):
            A(f"v_mul_f32 v{148+r}, v{132+r}, v{132+r}")
        A("v_mov_b32 v180, s65")
        for r in range(16):
            A(f"v_fma_f32 v{148+r}, v{148+r}, s66, v180")
        for r in range(16):
            A(f"v_mul_f32 v{148+r}, v{148+r}, v{132+r}")
        for r in range(16):
            A(f"v_exp_f32 v{148+r}, v{148+r}")
        for r in range(16):
            A(f"v_add_f32 v{148+r}, 1.0, v{148+r}")
        for r in range(16):
            A(f"v_rcp_f32 v{148+r}, v{148+r}")
        for r in range(16):
            A(f"v_mul_f32 v{148+r}, v{148+r}, v{132+r}")
        o = 164 + 8 * (i & 1)
        for r in range(8):
            A(f"v_cvt_pk_bf16_f32 v{o+r}, v{148+2*r}, v{149+2*r}")
        A(f"buffer_store_dwordx4 v[{o}:{o+3}], v216, s[24:27], s3 offen sc1")
        A(f"buffer_store_dwordx4 v[{o+4}:{o+7}], v216, s[24:27], s3 offen offset:1024 sc1")
        A("s_add_u32 s3, s3, 4096")
    A.label(f"{L}_done")
    publish(A, L, L == "k1q")


def poll(A, tag, vt, va, srd_):
    A("s_mov_b32 s79, 0")
    A.label(f"pl_{tag}")
    A(f"buffer_load_dword v{vt}, v{va}, s[{srd_}:{srd_+3}], 0 offen sc1")
    A("s_waitcnt vmcnt(0)")
    A(f"v_cmp_ne_u32 vcc, 0, v{vt}")
    A("s_cmp_eq_u64 vcc, -1")
    A(f"s_cbranch_scc1 pd_{tag}")
    A("s_add_u32 s79, s79, 1")
    A(f"s_cmp_lt_u32 s79, {SPIN_MAX}")
    A(f"s_cbranch_scc0 pd_{tag}")
    A("s_sleep 1")
    A(f"s_branch pl_{tag}")
    A.label(f"pd_{tag}")


def k2_wdma(A, i):
    sl = i % K2_D
    A(f"s_add_u32 s76, s71, {i * 65536}")
    A(f"s_add_u32 m0, s68, {sl*2048}")
    A(f"buffer_load_dwordx4 v250, s[8:11], s76 offen lds")
    A(f"s_add_u32 s76, s76, 8192")
    A(f"s_add_u32 m0, s68, {sl*2048+1024}")
    A(f"buffer_load_dwordx4 v250, s[8:11], s76 offen lds")


def k2_early(A, L):
    srd(A, 8, P_W2, P_W2 + 1, 1376 * 1024)
    srd(A, 72, P_DBG, P_DBG + 1, 256)
    A("v_bfe_u32 v250, v1, 2, 2")
    A("v_lshl_add_u32 v250, v15, 2, v250")
    A("v_lshlrev_b32 v250, 10, v250")
    A("v_bfe_u32 v251, v1, 4, 1")
    A("v_lshl_add_u32 v250, v251, 6, v250")
    A("v_and_b32 v251, 3, v1")
    A("v_lshl_add_u32 v250, v251, 4, v250")
    A("s_lshl_b32 s3, s5, 7")
    A("v_add_u32 v250, s3, v250")
    A(f"s_mul_i32 s68, s6, {K2_RING}")
    A(f"s_add_u32 s68, s68, {K2_RB}")
    A("s_lshl_b32 s71, s6, 14")
    A("v_mov_b32 v251, 0")
    A("s_cmp_ge_u32 s6, 4")
    A(f"s_cbranch_scc1 {L}_noearly")
    for i in range(K2_D):
        k2_wdma(A, i)
    A("buffer_load_dword v249, v251, s[72:75], 0 offen sc1")
    A.label(f"{L}_noearly")


def publish(A, L, qkv):
    stamp(A, 3)
    A("s_waitcnt vmcnt(0)")
    srd(A, 16, P_WS, P_WS + 1, FL_SIZE, FL_OFF)
    A("s_cmp_lg_u32 s6, 0")
    A(f"s_cbranch_scc1 {L}_pb")
    A("v_cmp_ne_u32 vcc, 0, v249")
    A("s_cmp_eq_u64 vcc, -1")
    A(f"s_cbranch_scc1 {L}_pb")
    poll(A, f"{L}_init", 249, 251, 72)
    A.label(f"{L}_pb")
    A("s_barrier")
    A("s_cmp_lg_u32 s6, 0")
    A(f"s_cbranch_scc1 {L}_pc")
    A("s_mov_b64 exec, 1")
    A("v_mov_b32 v251, 1")
    A("v_mov_b32 v252, 0")
    A("s_lshl_b32 s3, s4, 7")
    A("s_lshl_b32 s59, s5, 2")
    A("s_add_u32 s3, s3, s59")
    if qkv:
        A(f"s_add_u32 s3, s3, {FL_HF + 32}")
        A("buffer_store_dword v251, v252, s[16:19], s3 offen sc1")
        A("s_lshl_b32 s3, s5, 7")
        A("s_lshl_b32 s59, s4, 2")
        A("s_add_u32 s3, s3, s59")
        A(f"s_add_u32 s3, s3, {FL_KF}")
        A("buffer_store_dword v251, v252, s[16:19], s3 offen sc1")
    else:
        A("buffer_store_dword v251, v252, s[16:19], s3 offen sc1")
    A("s_mov_b64 exec, -1")
    A.label(f"{L}_pc")
    A("s_cmp_lt_u32 s6, 4")
    A("s_cbranch_scc1 phase2")
    if qkv:
        A("s_cmp_eq_u32 s6, 4")
        A("s_cbranch_scc1 reducer")
    A("s_endpgm")


def reducer(A):
    A.label("reducer")
    A.fence()
    srd(A, 8, P_WS, P_WS + 1, KVP_SIZE, KVP_OFF)
    srd(A, 12, P_WS, P_WS + 1, KVF_SIZE, KVF_OFF)
    A("s_lshl_b32 s59, s5, 2")
    A("s_lshr_b32 s3, s4, 2")
    A("s_add_u32 s59, s59, s3")
    A("s_and_b32 s60, s4, 3")
    A("v_min_u32 v2, 15, v1")
    A("v_lshlrev_b32 v2, 2, v2")
    A("s_lshl_b32 s3, s5, 7")
    A(f"s_add_u32 s3, s3, {FL_KF}")
    A("v_add_u32 v2, s3, v2")
    poll(A, "red", 3, 2, 16)
    A("v_lshlrev_b32 v1, 4, v1")
    A("s_lshl_b32 s3, s59, 2")
    A("s_add_u32 s3, s3, s60")
    A("s_lshl_b32 s61, s3, 2")
    A("s_lshl_b32 s3, s3, 10")
    for p in range(16):
        A(f"s_add_u32 s4, s3, {p * 32 * 4096}")
        A(f"buffer_load_dwordx4 v[{8+4*p}:{11+4*p}], v1, s[8:11], s4 offen sc1")
    for p in range(1, 16):
        A(f"s_waitcnt vmcnt({15-p})")
        for e in range(4):
            A(f"v_add_f32 v{8+e}, v{8+e}, v{8+4*p+e}")
    A("v_cvt_pk_bf16_f32 v4, v8, v9")
    A("v_cvt_pk_bf16_f32 v5, v10, v11")
    A("s_lshl_b32 s3, s59, 11")
    A("s_lshr_b32 s4, s60, 1")
    A("s_lshl_b32 s4, s4, 10")
    A("s_add_u32 s3, s3, s4")
    A("s_and_b32 s4, s60, 1")
    A("s_lshl_b32 s4, s4, 3")
    A("s_add_u32 s3, s3, s4")
    A("buffer_store_dwordx2 v[4:5], v1, s[12:15], s3 offen sc1")
    A("s_waitcnt vmcnt(0)")
    A("s_mov_b64 exec, 1")
    A("v_mov_b32 v4, 1")
    A("v_mov_b32 v5, 0")
    A(f"s_add_u32 s61, s61, {FL_RF}")
    A("buffer_store_dword v4, v5, s[16:19], s61 offen sc1")
    A("s_endpgm")

def k1(A):
    A.raw(".p2align 8")
    A.raw(".type fused_kernel,@function")
    A.label("fused_kernel")
    A("s_cmp_ge_u32 s2, 256")
    A("s_cbranch_scc1 k1_exit")
    stamp(A, 0)
    load_kernargs(A)
    A("v_and_b32 v1, 63, v0")
    A("v_lshrrev_b32 v2, 6, v0")
    A("v_readfirstlane_b32 s6, v2")
    A("s_and_b32 s3, s2, 7")
    A("s_lshr_b32 s59, s2, 3")
    A("s_lshr_b32 s4, s3, 1")
    A("s_lshl_b32 s4, s4, 2")
    A("s_lshr_b32 s5, s59, 3")
    A("s_add_u32 s4, s4, s5")
    A("s_and_b32 s5, s59, 7")
    A("s_and_b32 s68, s3, 1")
    A("s_and_b32 s7, s6, 3")
    A("s_lshr_b32 s58, s6, 2")
    A("s_waitcnt lgkmcnt(0)")
    A("s_cmp_lg_u32 s2, 0")
    A("s_cbranch_scc1 k1_noinit")
    A("s_cmp_lg_u32 s6, 7")
    A("s_cbranch_scc1 k1_noinit")
    srd(A, 8, P_WS, P_WS + 1, FL_SIZE, FL_OFF)
    A("v_lshlrev_b32 v2, 4, v1")
    for k in range(4):
        A(f"v_mov_b32 v{4+k}, 0")
    for k in range(4):
        A(f"buffer_store_dwordx4 v[4:7], v2, s[8:11], 0 offen offset:{k*1024} sc1")
    A.label("k1_noinit")
    A.fence()
    A("s_cmp_eq_u32 s68, 0")
    A("s_cbranch_scc0 k1_mlp")
    k1_path(A, "qkv")
    A.label("k1_mlp")
    k1_path(A, "mlp")
    k2(A)
    reducer(A)
    A.label("k1_exit")
    A("s_endpgm")


def kred_body(A, head_sreg):
    srd(A, 8, P_WS, P_WS + 1, KVP_SIZE, KVP_OFF)
    srd(A, 12, P_WS, P_WS + 1, KVF_SIZE, KVF_OFF)
    A("v_lshlrev_b32 v1, 4, v0")
    A(f"s_lshl_b32 s3, s{head_sreg}, 12")
    for p in range(16):
        A(f"s_add_u32 s4, s3, {p * 32 * 4096}")
        A(f"buffer_load_dwordx4 v[{8+4*p}:{11+4*p}], v1, s[8:11], s4 offen")
    for p in range(1, 16):
        A(f"s_waitcnt vmcnt({15-p})")
        for e in range(4):
            A(f"v_add_f32 v{8+e}, v{8+e}, v{8+4*p+e}")
    A("v_cvt_pk_bf16_f32 v4, v8, v9")
    A("v_cvt_pk_bf16_f32 v5, v10, v11")
    A("v_lshrrev_b32 v2, 6, v0")
    A("v_and_b32 v3, 63, v0")
    A("v_lshlrev_b32 v3, 4, v3")
    A("v_lshrrev_b32 v6, 1, v2")
    A("v_lshl_add_u32 v3, v6, 10, v3")
    A("v_and_b32 v6, 1, v2")
    A("v_lshl_add_u32 v3, v6, 3, v3")
    A(f"s_lshl_b32 s3, s{head_sreg}, 11")


def kred(A):
    A.raw(".p2align 8")
    A.raw(".type kred_kernel,@function")
    A.label("kred_kernel")
    A("s_cmp_ge_u32 s2, 32")
    A("s_cbranch_scc1 kred_exit")
    load_kernargs(A)
    A("s_waitcnt lgkmcnt(0)")
    kred_body(A, 2)
    A("buffer_store_dwordx2 v[4:5], v3, s[12:15], s3 offen")
    A.label("kred_exit")
    A("s_endpgm")


K2_D = 8
K2_RING = K2_D * 2048
K2_LDS = 4 * K2_RING


def k2(A):
    D = K2_D
    A.label("phase2")
    A.fence()
    A("s_and_b32 s3, s2, 7")
    A("s_lshr_b32 s59, s2, 3")
    A("s_lshl_b32 s4, s3, 2")
    A("s_lshr_b32 s5, s59, 3")
    A("s_add_u32 s4, s4, s5")
    A("s_and_b32 s5, s59, 7")
    srd(A, 32, P_WS, P_WS + 1, FL_SIZE, FL_OFF)
    srd(A, 12, P_WO, P_WO + 1, 512 * 1024)
    srd(A, 16, P_WS, P_WS + 1, H_SIZE, H_OFF)
    srd(A, 20, P_WS, P_WS + 1, PHIQ_SIZE, PHIQ_OFF)
    srd(A, 24, P_WS, P_WS + 1, KVF_SIZE, KVF_OFF)
    srd(A, 28, P_WS, P_WS + 1, G_SIZE, G_OFF)
    srd(A, 60, P_B2, P_B2 + 1, 1024)
    srd(A, 64, P_OUT, P_OUT + 1, 2048 * 1024)
    A("v_and_b32 v7, 31, v1")
    A("v_lshrrev_b32 v15, 5, v1")
    A("s_lshr_b32 s3, s6, 1")
    A("s_lshl_b32 s3, s3, 6")
    A("s_lshl_b32 s59, s5, 7")
    A("s_add_u32 s3, s3, s59")
    A("v_lshlrev_b32 v2, 3, v15")
    A("v_add_u32 v2, s3, v2")
    for q in range(4):
        A(f"buffer_load_dwordx2 v[{240+2*q}:{241+2*q}], v2, s[60:63], 0 offen offset:{q*16}")
    A("s_lshr_b32 s3, s4, 1")
    A("s_lshl_b32 s3, s3, 7")
    A("v_min_u32 v5, 7, v1")
    A("v_lshlrev_b32 v5, 2, v5")
    A("v_add_u32 v5, s3, v5")
    A("v_and_b32 v251, 7, v1")
    A("v_lshlrev_b32 v251, 2, v251")
    A("v_add_u32 v251, s3, v251")
    A("v_add_u32 v251, 32, v251")
    A("s_lshl_b32 s3, s6, 7")
    A(f"s_add_u32 s3, s3, {FL_RF}")
    A("v_lshl_add_u32 v252, v1, 2, s3")
    A("v_cmp_gt_u32 vcc, 32, v1")
    A("v_cndmask_b32 v251, v251, v252, vcc")
    A("v_lshlrev_b32 v3, 4, v1")
    A("v_lshlrev_b32 v4, 9, v15")
    A("v_bfe_u32 v6, v1, 2, 2")
    A("v_lshl_add_u32 v4, v6, 6, v4")
    A("v_bfe_u32 v6, v1, 4, 1")
    A("v_lshl_add_u32 v4, v6, 5, v4")
    A("v_and_b32 v6, 3, v1")
    A("v_lshl_add_u32 v4, v6, 3, v4")
    A("v_add_u32 v4, s68, v4")
    A("s_lshl_b32 s3, s4, 1")
    A("s_mul_i32 s69, s3, 86")
    A("s_add_u32 s69, s69, s6")
    A("s_lshl_b32 s69, s69, 10")
    A(f"s_add_u32 s70, s69, {86*1024}")
    A("s_lshl_b32 s72, s3, 5")
    A("s_lshl_b32 s59, s6, 3")
    A("s_add_u32 s72, s72, s59")
    A("s_lshl_b32 s72, s72, 11")
    A(f"s_add_u32 s73, s72, {32*2048}")
    A("s_lshl_b32 s74, s6, 14")
    A("s_lshl_b32 s75, s6, 17")
    A("s_lshl_b32 s3, s4, 6")
    A("v_add_u32 v2, s3, v7")
    A("v_lshlrev_b32 v2, 2, v2")
    poll(A, "h", 6, 5, 32)
    stamp(A, 4)
    A("buffer_load_dword v10, v2, s[28:31], 0 offen sc1")
    A("buffer_load_dword v11, v2, s[28:31], 0 offen offset:128 sc1")

    NH, NA = 22, 8
    NS = NH + NA
    ACC = 16
    BF = 80
    AF = [144, 152]
    PQ = 160
    KV = 192
    ND = 208

    vm = []

    def issue(i, wpart=True):
        sl = i % D
        if i < NH:
            if wpart:
                k2_wdma(A, i)
                vm.extend([("s", i)] * 2)
            A(f"s_add_u32 s76, s69, {i * 4096}")
            A(f"s_add_u32 s77, s70, {i * 4096}")
            A(f"buffer_load_dwordx4 v[{BF+sl*8}:{BF+sl*8+3}], v3, s[16:19], s76 offen sc1")
            A(f"buffer_load_dwordx4 v[{BF+sl*8+4}:{BF+sl*8+7}], v3, s[16:19], s77 offen sc1")
            vm.extend([("s", i)] * 2)
        else:
            hh = i - NH
            A(f"s_add_u32 s76, s75, {hh * 16384}")
            A(f"s_add_u32 m0, s68, {sl*2048}")
            A(f"buffer_load_dwordx4 v250, s[12:15], s76 offen lds")
            A(f"s_add_u32 s76, s76, 8192")
            A(f"s_add_u32 m0, s68, {sl*2048+1024}")
            A(f"buffer_load_dwordx4 v250, s[12:15], s76 offen lds")
            vm.extend([("s", i)] * 2)

    def issue_attn(hh):
        pb = PQ + (hh & 1) * 16
        kb = KV + (hh & 1) * 8
        A(f"s_add_u32 s76, s72, {hh*2048}")
        A(f"s_add_u32 s77, s73, {hh*2048}")
        A(f"s_add_u32 s78, s74, {hh*2048}")
        A(f"buffer_load_dwordx4 v[{kb}:{kb+3}], v3, s[24:27], s78 offen sc1")
        A(f"buffer_load_dwordx4 v[{kb+4}:{kb+7}], v3, s[24:27], s78 offen offset:1024 sc1")
        A(f"buffer_load_dwordx4 v[{pb}:{pb+3}], v3, s[20:23], s76 offen sc1")
        A(f"buffer_load_dwordx4 v[{pb+4}:{pb+7}], v3, s[20:23], s76 offen offset:1024 sc1")
        A(f"buffer_load_dwordx4 v[{pb+8}:{pb+11}], v3, s[20:23], s77 offen sc1")
        A(f"buffer_load_dwordx4 v[{pb+12}:{pb+15}], v3, s[20:23], s77 offen offset:1024 sc1")
        vm.extend([("a", hh)] * 6)

    def wait_for(tag):
        last = max(k for k, t in enumerate(vm) if t == tag)
        n = len(vm) - 1 - last
        A(f"s_waitcnt vmcnt({min(n, 63)})")

    def areads(i):
        sl = i % D
        af = AF[i & 1]
        for ft in range(2):
            for jj in range(2):
                r = af + ft * 4 + jj * 2
                A(f"ds_read_b64_tr_b16 v[{r}:{r+1}], v4 offset:{sl*2048 + jj*1024 + ft*256}")

    for i in range(D):
        issue(i, wpart=False)
    wait_for(("s", 0))
    stamp(A, 5)
    areads(0)
    for i in range(NS):
        A.comment(f"step {i}")
        if i == NH:
            stamp(A, 6)
        sl = i % D
        af = AF[i & 1]
        if i + 1 < NS:
            wait_for(("s", i + 1))
            areads(i + 1)
            A("s_waitcnt lgkmcnt(4)")
        else:
            A("s_waitcnt lgkmcnt(0)")
        if i < NH:
            b0 = BF + sl * 8
            for ft in range(2):
                for tk in range(2):
                    acc = ACC + (ft * 2 + tk) * 16
                    cin = "0" if i == 0 else f"v[{acc}:{acc+15}]"
                    A(f"v_mfma_f32_32x32x16_bf16 v[{acc}:{acc+15}], v[{af+ft*4}:{af+ft*4+3}], v[{b0+tk*4}:{b0+tk*4+3}], {cin}")
        else:
            hh = i - NH
            pb = PQ + (hh & 1) * 16
            kb = KV + (hh & 1) * 8
            wait_for(("a", hh))
            for tk in range(2):
                nd = ND + tk * 16
                A(f"v_mfma_f32_32x32x16_bf16 v[{nd}:{nd+15}], v[{kb}:{kb+3}], v[{pb+tk*8}:{pb+tk*8+3}], 0")
                A(f"v_mfma_f32_32x32x16_bf16 v[{nd}:{nd+15}], v[{kb+4}:{kb+7}], v[{pb+tk*8+4}:{pb+tk*8+7}], v[{nd}:{nd+15}]")
            for tk in range(2):
                nd = ND + tk * 16
                num, den = (nd, nd + 8) if hh % 2 == 0 else (nd + 8, nd)
                A(f"v_add_f32 v{den}, {fbits(1e-6)}, v{den}")
                A(f"v_rcp_f32 v{den}, v{den}")
                A(f"v_mul_f32 v{den}, v{den}, v{10+tk}")
                for e in range(8):
                    A(f"v_mul_f32 v{num+e}, v{num+e}, v{den}")
                ob = BF + tk * 4
                for e in range(4):
                    A(f"v_cvt_pk_bf16_f32 v{ob+e}, v{num+2*e}, v{num+2*e+1}")
            for ft in range(2):
                for tk in range(2):
                    acc = ACC + (ft * 2 + tk) * 16
                    A(f"v_mfma_f32_32x32x16_bf16 v[{acc}:{acc+15}], v[{af+ft*4}:{af+ft*4+3}], v[{BF+tk*4}:{BF+tk*4+3}], v[{acc}:{acc+15}]")
            if hh + 2 < NA:
                issue_attn(hh + 2)
        if i + D < NS:
            issue(i + D)
        if i == NH - 9:
            A("buffer_load_dword v249, v251, s[32:35], 0 offen sc1")
            vm.append(("p", 0))
        if i == NH - 3:
            wait_for(("p", 0))
            A("v_cmp_ne_u32 vcc, 0, v249")
            A("s_cmp_eq_u64 vcc, -1")
            A("s_cbranch_scc1 k2_pok")
            poll(A, "a", 249, 251, 32)
            A.label("k2_pok")
            issue_attn(0)
        if i == NH - 2:
            issue_attn(1)
        if i == NH - 1:
            A("v_sub_f32 v12, 1.0, v10")
            A("v_sub_f32 v13, 1.0, v11")
            for ft in range(2):
                for tk in range(2):
                    acc = ACC + (ft * 2 + tk) * 16
                    for e in range(16):
                        A(f"v_mul_f32 v{acc+e}, v{acc+e}, v{12+tk}")
    A("s_barrier")
    for t in range(4):
        A(f"s_cmp_eq_u32 s6, {t}")
        A(f"s_cbranch_scc1 k2_sk{t}")
        A(f"s_sub_u32 s3, s6, {t+1}")
        A("s_and_b32 s3, s3, 3")
        A("s_lshl_b32 s3, s3, 12")
        A(f"s_add_u32 s3, s3, {t*12288}")
        A("v_add_u32 v5, s3, v3")
        for q in range(4):
            r = ACC + t * 16 + q * 4
            A(f"ds_write_b128 v5, v[{r}:{r+3}] offset:{q*1024}")
        A.label(f"k2_sk{t}")
    A("s_waitcnt lgkmcnt(0)")
    A("s_barrier")
    A("s_mul_i32 s3, s6, 12288")
    A("v_add_u32 v5, s3, v3")
    for k in range(12):
        A(f"ds_read_b128 v[{80+4*k}:{83+4*k}], v5 offset:{k*1024}")
    for t in range(4):
        A(f"s_cmp_lg_u32 s6, {t}")
        A(f"s_cbranch_scc1 k2_mv{t}")
        for e in range(16):
            A(f"v_mov_b32 v{144+e}, v{ACC+t*16+e}")
        A(f"v_mov_b32 v14, v{12+(t&1)}")
        A.label(f"k2_mv{t}")
    A("s_waitcnt lgkmcnt(0)")
    for k in range(3):
        for e in range(16):
            A(f"v_add_f32 v{144+e}, v{144+e}, v{80+16*k+e}")
    for q in range(4):
        bb = 240 + 2 * q
        A(f"v_lshlrev_b32 v80, 16, v{bb}")
        A(f"v_and_b32 v81, 0xffff0000, v{bb}")
        A(f"v_lshlrev_b32 v82, 16, v{bb+1}")
        A(f"v_and_b32 v83, 0xffff0000, v{bb+1}")
        for e in range(4):
            A(f"v_fma_f32 v{144+4*q+e}, v{80+e}, v14, v{144+4*q+e}")
    for r in range(8):
        A(f"v_cvt_pk_bf16_f32 v{160+r}, v{144+2*r}, v{145+2*r}")
    A("v_permlane32_swap_b32 v160, v162")
    A("v_permlane32_swap_b32 v161, v163")
    A("v_permlane32_swap_b32 v164, v166")
    A("v_permlane32_swap_b32 v165, v167")
    A("s_lshl_b32 s3, s4, 6")
    A("s_and_b32 s59, s6, 1")
    A("s_lshl_b32 s59, s59, 5")
    A("s_add_u32 s3, s3, s59")
    A("v_add_u32 v5, s3, v7")
    A("v_lshlrev_b32 v5, 10, v5")
    A("v_lshl_add_u32 v5, v15, 4, v5")
    A("s_lshl_b32 s3, s5, 7")
    A("s_lshr_b32 s59, s6, 1")
    A("s_lshl_b32 s59, s59, 6")
    A("s_add_u32 s3, s3, s59")
    A("buffer_store_dwordx4 v[160:163], v5, s[64:67], s3 offen")
    A("buffer_store_dwordx4 v[164:167], v5, s[64:67], s3 offen offset:32")
    stamp(A, 7)
    stamp_out(A, 8, 0, "k2")
    A("s_endpgm")


HEADER = open("cdna_kernels/" + NAME + ".s.ref").read().split("; Override")[0]


def kd(name, vgpr, sgpr=102):
    return f""".amdhsa_kernel {name}
  .amdhsa_next_free_vgpr {vgpr}
  .amdhsa_next_free_sgpr {sgpr}
  .amdhsa_accum_offset {vgpr}
  .amdhsa_group_segment_fixed_size 0
  .amdhsa_kernarg_size 104
  .amdhsa_user_sgpr_count 2
  .amdhsa_user_sgpr_kernarg_segment_ptr 1
  .amdhsa_system_sgpr_workgroup_id_x 1
.end_amdhsa_kernel
"""


def main():
    out = HEADER
    out += f"; @launch kernel=fused_kernel grid=(256,1,1) block=(512,1,1) lds={K1_LDS}\n"
    out += '.amdgcn_target "amdgcn-amd-amdhsa--gfx950"\n.text\n'
    A = Asm()
    out += ".globl fused_kernel\n"
    k1(A)
    out += A.finish()
    out += '.section .rodata,"a"\n'
    out += ".p2align 6\n" + kd("fused_kernel", 256)
    path = sys.argv[1] if len(sys.argv) > 1 else "cdna_kernels/" + NAME + ".s"
    open(path, "w").write(out)
    print("wrote", path, len(out))


if __name__ == "__main__":
    main()
```
